```python
import torch

def _softmax(x, axis=-1):
    return torch.softmax(x, dim=axis)
def _gelu(x):
    return torch.nn.functional.gelu(x, approximate="tanh")
def _silu(x):
    return torch.nn.functional.silu(x)
def _sigmoid(x):
    return torch.sigmoid(x)
def _layernorm(x, axis=-1, eps=1e-5):
    m = x.mean(dim=axis, keepdim=True)
    v = x.var(dim=axis, keepdim=True, unbiased=False)
    return (x - m) / torch.sqrt(v + eps)
def _scatter_add(tgt, idx, src, axis=0):
    return tgt.clone().index_add_(axis, idx, src)
def _segment_sum(src, seg, n):
    out = torch.zeros((n,) + src.shape[1:], dtype=src.dtype)
    return out.index_add_(0, seg, src)
def _pad(x, pw):
    flat = tuple(v for pair in reversed(pw) for v in pair)
    return torch.nn.functional.pad(x, flat)

kernel_name = 'parallel_sum__grouped_kv_mqa__glu_gated_glu__prompt'

def setup_inputs():

    _w = (lambda a: (lambda t: t.to(torch.bfloat16) if t.is_floating_point() else t)(torch.as_tensor(a)))
    def _A_setup():
        B, S, D, H = 1, 2048, 448, 16
        Dh = D // H
        return {
            "x": _w((lambda *s: torch.randn(*s, dtype=torch.bfloat16) * 0.05)(B, S, D)),
            "wq": _w((lambda *s: torch.randn(*s, dtype=torch.bfloat16) * 0.2)(D, H * Dh)),
            "wk": _w((lambda *s: torch.randn(*s, dtype=torch.bfloat16) * 0.2)(D, Dh)),
            "wv": _w((lambda *s: torch.randn(*s, dtype=torch.bfloat16) * 0.1)(D, Dh)),
            "wo": _w((lambda *s: torch.randn(*s, dtype=torch.bfloat16) * 0.1)(H * Dh, D)),
        }
    _A_in = _A_setup()

    def _B_setup():
        B, S, D, F = 1, 2048, 448, 1792
        return {
            "x": _w((lambda *s: torch.randn(*s, dtype=torch.bfloat16) * 0.05)(B, S, D)),
            "w_gate": _w((lambda *s: torch.randn(*s, dtype=torch.bfloat16) * 0.2)(D, F)),
            "w_up": _w((lambda *s: torch.randn(*s, dtype=torch.bfloat16) * 0.1)(D, F)),
            "w_down": _w((lambda *s: torch.randn(*s, dtype=torch.bfloat16) * 0.1)(F, D)),
        }
    _B_in = _B_setup()

    return {
        "A_x": _A_in["x"],
        "A_wq": _A_in["wq"],
        "A_wk": _A_in["wk"],
        "A_wv": _A_in["wv"],
        "A_wo": _A_in["wo"],
        "B_x": _B_in["x"],
        "B_w_gate": _B_in["w_gate"],
        "B_w_up": _B_in["w_up"],
        "B_w_down": _B_in["w_down"],
    }

def reference(A_x, A_wq, A_wk, A_wv, A_wo, B_x, B_w_gate, B_w_up, B_w_down):
    def _A_ref(x, wq, wk, wv, wo):
        B, S, D = x.shape
        H = 16
        Dh = D // H
        q = (lambda x, *d: x.permute(*d))((x @ wq).reshape(B, S, H, Dh), 0, 2, 1, 3)
        k = x @ wk
        v = x @ wv
        scores = torch.einsum("bhqd,bkd->bhqk", q, k) * (Dh ** -0.5)
        p = _softmax(scores, axis=-1)
        o = torch.einsum("bhqk,bkd->bhqd", p, v)
        return (lambda x, *d: x.permute(*d))(o, 0, 2, 1, 3).reshape(B, S, H * Dh) @ wo

    def _B_ref(x, w_gate, w_up, w_down):
        g = torch.einsum("bsd,df->bsf", x, w_gate)
        u = torch.einsum("bsd,df->bsf", x, w_up)
        h = _sigmoid(g) * u
        return torch.einsum("bsf,fd->bsd", h, w_down)

    x = A_x
    xn = _layernorm(x, axis=-1)
    return x + _A_ref(xn, A_wq, A_wk, A_wv, A_wo) + _B_ref(xn, B_w_gate, B_w_up, B_w_down)
```

```python
class Asm:
    def __init__(self): self.l = []; self.uid = 0
    def __call__(self, s):
        for x in s.strip("\n").split("\n"): self.l.append("    " + x.strip())
    def label(self, n): self.l.append(n + ":")
    def raw(self, s): self.l.append(s)
    def newlabel(self, p="L"):
        self.uid += 1; return "%s_%d" % (p, self.uid)
    def text(self): return "\n".join(self.l) + "\n"
def v(i, n=1): return "v%d" % i if n == 1 else "v[%d:%d]" % (i, i + n - 1)
def a(i, n=1): return "a%d" % i if n == 1 else "a[%d:%d]" % (i, i + n - 1)
def s(i, n=1): return "s%d" % i if n == 1 else "s[%d:%d]" % (i, i + n - 1)
def kernel_head(A, name):
    A.raw(".text"); A.raw(".globl %s" % name); A.raw(".p2align 8"); A.raw(".type %s,@function" % name); A.label(name)
def kernel_desc(name, vgpr, sgpr=102, accum=None):
    if accum is None: accum = (vgpr + 3) // 4 * 4
    return """.section .rodata,"a"
.p2align 6
.amdhsa_kernel %s
  .amdhsa_next_free_vgpr %d
  .amdhsa_next_free_sgpr %d
  .amdhsa_accum_offset %d
  .amdhsa_group_segment_fixed_size 0
  .amdhsa_kernarg_size 96
  .amdhsa_user_sgpr_count 2
  .amdhsa_user_sgpr_kernarg_segment_ptr 1
  .amdhsa_system_sgpr_workgroup_id_x 1
  .amdhsa_float_denorm_mode_32 3
.end_amdhsa_kernel
""" % (name, vgpr, sgpr, min(accum, 256))
def srd(A, d, b, nbytes):
    A("s_mov_b32 s%d, s%d\ns_and_b32 s%d, s%d, 0xffff\ns_mov_b32 s%d, 0x%x\ns_mov_b32 s%d, 0x00020000" % (d, b, d + 1, b + 1, d + 2, nbytes, d + 3))
```

```python
from asmlib import *
QS_OFF=0; KV_OFF=0x200000; WF_OFF=0x240000; OF_OFF=0x430000; XB_OFF=0x600000; HF_OFF=0xA00000; WS_SIZE=0x1100000
LOG2E=1.4426950408889634
import struct
def fbits(x): return struct.unpack("<I", struct.pack("<f", x))[0]
K1_LDS=155648
def interleave(main, fill):
    out=[]; n=len(main); k=0
    for i,m in enumerate(main):
        out.append(m)
        tgt=(len(fill)*(i+1))//n
        while k<tgt: out.append(fill[k]); k+=1
    return out
def gen_k1(A, name="k1_kernel"):
    WB=49152; TS=147456
    kernel_head(A, name)
    A("s_cmp_ge_u32 s2, 256\ns_cbranch_scc1 k1_done")
    A("""s_load_dwordx8 s[8:15], s[0:1], 0
    s_load_dwordx2 s[16:17], s[0:1], 32
    s_load_dwordx4 s[20:23], s[0:1], 48
    s_load_dwordx2 s[18:19], s[0:1], 64
    s_load_dwordx2 s[24:25], s[0:1], 88
    v_readfirstlane_b32 s3, v0
    v_and_b32 v0, 63, v0
    s_and_b32 s4, s2, 7
    s_lshr_b32 s5, s2, 3
    s_lshr_b32 s3, s3, 6
    s_and_b32 s6, s4, 1
    s_lshl_b32 s6, s6, 3
    s_and_b32 s7, s5, 7
    s_add_u32 s6, s6, s7
    s_lshr_b32 s7, s4, 1
    s_lshl_b32 s7, s7, 2
    s_lshr_b32 s5, s5, 3
    s_add_u32 s7, s7, s5""")
    A("""s_lshr_b32 s44, s3, 2
    s_and_b32 s45, s3, 3
    s_and_b32 s46, s3, 1
    s_lshr_b32 s47, s3, 1
    s_xor_b32 s48, s47, s46""")
    A("""v_lshrrev_b32 v1, 4, v0
    v_bfe_u32 v2, v0, 2, 2
    v_and_b32 v3, 3, v0
    v_xor_b32 v4, v2, v1
    v_lshrrev_b32 v5, 5, v0
    v_and_b32 v6, 31, v0""")
    A("""s_lshl_b32 s49, s3, 4
    v_lshrrev_b32 v7, 3, v0
    v_add_u32 v7, s49, v7
    v_mul_u32_u24 v8, 896, v7
    v_and_b32 v10, 7, v0
    v_xor_b32 v11, v10, v1
    v_lshl_add_u32 v9, v11, 4, v8
    v_mov_b32 v8, v9
    v_xor_b32 v9, 64, v9
    v_add_u32 v9, 7168, v9""")
    A("s_waitcnt lgkmcnt(0)")
    srd(A, 28, 8, 2048*896)
    srd(A, 40, 24, WS_SIZE)
    A("""s_cmp_eq_u32 s44, 0
    s_cselect_b32 s32, s20, s22
    s_cselect_b32 s33, s21, s23
    s_lshl_b32 s50, s7, 8
    s_sub_u32 s51, s7, 14
    s_lshl_b32 s51, s51, 9
    s_lshl_b32 s52, s44, 8
    s_add_u32 s51, s51, s52
    s_cmp_lt_u32 s7, 14
    s_cselect_b32 s32, s32, s10
    s_cselect_b32 s33, s33, s11
    s_mov_b32 s34, %d
    s_cselect_b32 s34, %d, s34
    s_movk_i32 s53, 896
    s_cselect_b32 s53, 3584, s53
    s_cselect_b32 s50, s50, s51
    s_and_b32 s33, s33, 0xffff
    s_mov_b32 s35, 0x00020000""" % (448*896, 448*3584))
    A("""s_lshl_b32 s54, s45, 4
    s_mul_i32 s54, s54, s53
    s_add_u32 s54, s54, s50
    s_lshl_b32 s55, s53, 2
    s_mul_i32 s56, s53, 52
    v_mul_lo_u32 v12, v1, s53
    v_lshl_add_u32 v12, v4, 6, v12
    v_lshl_add_u32 v12, v3, 4, v12""")
    A("""s_lshl_b32 s57, s7, 1
    s_add_u32 s57, s57, s44
    s_cmp_eq_u32 s57, 31
    s_cselect_b32 s57, 1, 0""")
    A("""v_mov_b32 v14, s10
    v_mov_b32 v15, s11
    v_mov_b32 v13, 896
    v_lshlrev_b32 v20, 6, v4
    v_add_u32 v20, 768, v20
    v_mov_b32 v21, s12
    v_mov_b32 v22, s13
    v_cmp_eq_u32 vcc, 2, v4
    v_mov_b32 v23, s14
    v_mov_b32 v24, s15
    v_cndmask_b32 v14, v14, v21, vcc
    v_cndmask_b32 v15, v15, v22, vcc
    v_cmp_eq_u32 vcc, 3, v4
    v_mov_b32 v17, 0
    v_mov_b32 v19, 0
    v_cndmask_b32 v14, v14, v23, vcc
    v_cndmask_b32 v15, v15, v24, vcc
    v_cmp_lt_u32 vcc, 1, v4
    s_lshl_b32 s58, s45, 4
    v_mov_b32 v21, 56
    v_cndmask_b32 v13, v13, v21, vcc
    v_cndmask_b32 v20, v20, v17, vcc
    v_add_u32 v21, s58, v1
    v_mul_lo_u32 v21, v21, v13
    v_add_u32 v20, v20, v21
    v_lshl_add_u32 v16, v3, 4, v20
    v_lshl_add_u64 v[14:15], v[16:17], 0, v[14:15]
    v_lshlrev_b32 v16, 2, v13
    v_mul_u32_u24 v18, 52, v13""")
    A("""s_mul_i32 s59, s6, %d
    s_lshl_b32 s60, s3, 11
    s_mul_i32 s61, s45, 24576
    s_lshl_b32 s62, s44, 12
    s_add_u32 s61, s61, s62
    s_add_u32 s61, s61, %d""" % (128*896, WB))
    A("""s_lshl_b32 s63, s2, 3
    s_add_u32 s63, s63, s3
    s_mul_i32 s64, s63, 4682
    s_lshr_b32 s64, s64, 16
    s_mul_i32 s65, s64, 14
    s_sub_u32 s65, s63, s65
    s_sub_u32 s66, s64, 28
    s_cmp_lt_u32 s64, 28
    s_cselect_b32 s36, s16, s18
    s_cselect_b32 s37, s17, s19
    s_mov_b32 s38, %d
    s_cselect_b32 s38, %d, s38
    s_cselect_b32 s66, s64, s66
    s_and_b32 s37, s37, 0xffff
    s_mov_b32 s39, 0x00020000
    s_mul_i32 s66, s66, %d
    s_lshl_b32 s67, s65, 6
    s_add_u32 s66, s66, s67
    s_mul_i32 s67, s65, 140
    s_add_u32 s67, s67, s64
    s_lshl_b32 s67, s67, 10
    s_add_u32 s67, s67, %d
    s_cmp_lt_u32 s63, 1960
    s_cselect_b32 s67, s67, 0x7fff0000
    v_lshrrev_b32 v21, 2, v0
    v_mul_u32_u24 v21, 896, v21
    v_lshl_add_u32 v21, v3, 4, v21
    s_lshl_b32 s68, s3, 10
    s_add_u32 s68, s68, %d
    s_mov_b32 m0, s68
    s_nop 0
    buffer_load_dwordx4 v21, s[36:39], s66 offen lds""" % (1792*896, 448*896, 16*896, WF_OFF, TS))
    def dma(c):
        st=c%3; L=[]
        for e in range(2):
            L.append("s_add_u32 m0, s60, %d\ns_nop 0\nbuffer_load_dwordx4 v%d, s[28:31], s59 offen lds" % (st*16384+e*1024, 8+e))
        L.append("s_add_u32 s59, s59, 128")
        sp=A.newlabel("k1sp"); dn=A.newlabel("k1dn")
        t="s_cmp_eq_u32 s57, 1\ns_cbranch_scc1 %s\n" % sp
        for p in range(4):
            t+="s_add_u32 m0, s61, %d\ns_nop 0\nbuffer_load_dwordx4 v12, s[32:35], s54 offen lds\ns_add_u32 s54, s54, s%d\n" % (st*8192+p*1024, 56 if p==3 else 55)
        t+="s_branch %s\n%s:\n" % (dn, sp)
        for p in range(4):
            t+="s_add_u32 m0, s61, %d\ns_nop 0\nglobal_load_lds_dwordx4 v[14:15], off\nv_lshl_add_u64 v[14:15], v[%d:%d], 0, v[14:15]\n" % (st*8192+p*1024, 18 if p==3 else 16, 19 if p==3 else 17)
        t+="%s:" % dn
        L.append(t)
        return L
    for c in range(3):
        for x in dma(c): A(x)
    A("""v_bfe_u32 v20, v0, 1, 3
    v_xor_b32 v20, v20, v5
    v_lshlrev_b32 v20, 4, v20
    v_lshl_add_u32 v20, v6, 7, v20
    s_lshl_b32 s62, s46, 13
    v_add_u32 v20, s62, v20
    v_lshl_add_u32 v21, v5, 3, v2
    v_lshlrev_b32 v21, 8, v21
    v_xor_b32 v22, s47, v2
    v_lshl_add_u32 v21, v22, 6, v21
    v_and_b32 v22, 1, v1
    v_lshlrev_b32 v22, 5, v22
    v_lshl_add_u32 v22, v3, 3, v22
    v_add_u32 v21, v21, v22
    v_lshl_add_u32 v32, v5, 2, v2
    v_lshl_add_u32 v32, v32, 6, v22""")
    for i in range(4):
        A("""s_xor_b32 s62, s48, %d
        s_lshl_b32 s69, s62, 5
        v_xor_b32 v%d, s69, v20
        s_mul_i32 s62, s62, 24576
        s_add_u32 s62, s62, %d
        v_add_u32 v%d, s62, v21""" % (i, 24+i, WB, 28+i))
    for r in range(64,128): A("v_mov_b32 v%d, 0" % r)
    for r in range(160,168): A("v_mov_b32 v%d, 0" % r)
    for r in range(36,40): A("v_mov_b32 v%d, 0" % r)
    A("""v_mov_b32 v33, 0x3f803f80
    v_cmp_eq_u32 vcc, 0, v6
    v_cmp_eq_u32 s[70:71], 20, v6
    s_nop 1
    s_or_b64 vcc, vcc, s[70:71]
    v_mov_b32 v34, 0
    s_nop 1
    v_cndmask_b32 v168, v34, v33, vcc
    v_mov_b32 v169, v168
    v_mov_b32 v170, v168
    v_mov_b32 v171, v168
    s_mov_b32 s72, 0xffff0000""")
    def xr(P, tok): return (172 if P%4==0 else 128+16*(P%2))+4*tok
    def wr(P, hf): return 136+16*(P%2)+4*hf
    def reads(P):
        c,i=divmod(P,4); st=c%3; L=[]
        for hf in range(2):
            for z in range(2):
                L.append("ds_read_b64_tr_b16 v[%d:%d], v%d offset:%d" % (wr(P,hf)+2*z, wr(P,hf)+2*z+1, 28+i, st*8192+hf*4096+z*1024))
            L.append("ds_read_b128 v[%d:%d], v%d offset:%d" % (xr(P,hf), xr(P,hf)+3, 24+i, st*16384+hf*4096))
        return L
    def stats_ops():
        L=[]
        for tok in range(2):
            for r in range(4):
                src=172+4*tok+r; t0=40+2*(r%2); t1=t0+1
                L+=["v_and_b32 v%d, s72, v%d" % (t0,src), "v_lshlrev_b32 v%d, 16, v%d" % (t1,src),
                    "v_add_f32 v%d, v%d, v%d" % (36+2*tok,36+2*tok,t0), "v_fmac_f32 v%d, v%d, v%d" % (37+2*tok,t0,t0),
                    "v_add_f32 v%d, v%d, v%d" % (36+2*tok,36+2*tok,t1), "v_fmac_f32 v%d, v%d, v%d" % (37+2*tok,t1,t1)]
        return L
    A("s_waitcnt vmcnt(12)\ns_barrier")
    for x in reads(0): A(x)
    so=stats_ops()
    for P in range(28):
        c,i=divmod(P,4)
        fill=[]
        if i==3 and c<6:
            A("s_waitcnt vmcnt(%d) lgkmcnt(0)\ns_barrier" % (6 if c+1<6 else 0))
            for x in reads(P+1): A(x)
            if c+3<=6: fill+=dma(c+3)
        elif P<27:
            for x in reads(P+1): A(x)
            A("s_waitcnt lgkmcnt(6)")
        else:
            A("""s_lshl_b32 s62, s46, 12
            s_lshl_b32 s69, s47, 4
            s_add_u32 s62, s62, s69
            s_add_u32 s62, s62, 16384
            v_lshlrev_b32 v44, 6, v6
            v_lshl_add_u32 v45, v5, 3, v44
            v_add_u32 v45, s62, v45
            s_waitcnt lgkmcnt(0)
            ds_write_b64 v45, v[36:37]
            ds_write_b64 v45, v[38:39] offset:2048""")
        if i<3: fill+=so[16*i:16*i+16]
        mm=[]
        for hf in range(2):
            for tok in range(2):
                acc=64+32*hf+16*tok
                mm.append("v_mfma_f32_32x32x16_bf16 v[%d:%d], v[%d:%d], v[%d:%d], v[%d:%d]" % (acc,acc+15,wr(P,hf),wr(P,hf)+3,xr(P,tok),xr(P,tok)+3,acc,acc+15))
            if i%2==1:
                mm.append("v_mfma_f32_16x16x32_bf16 v[%d:%d], v[168:171], v[%d:%d], v[%d:%d]" % (160+4*hf,163+4*hf,wr(P,hf),wr(P,hf)+3,160+4*hf,163+4*hf))
        if P==27: mm=[mm[2],mm[5],mm[0],mm[1],mm[3],mm[4]]
        for x in interleave(mm, fill): A(x)
    A("""s_lshl_b32 s62, s47, 9
    s_add_u32 s62, s62, 24576
    v_lshlrev_b32 v46, 2, v6
    v_add_u32 v46, s62, v46
    s_lshl_b32 s69, s46, 7
    v_add_u32 v47, s69, v46
    v_add_u32 v48, s68, v32
    s_nop 2
    s_mov_b32 exec_hi, 0
    ds_write_b32 v47, v160
    ds_write_b32 v47, v164 offset:256
    s_mov_b32 exec_hi, -1
    ds_read_b64_tr_b16 v[128:129], v48
    ds_read_b64_tr_b16 v[130:131], v48 offset:512
    s_lshl_b32 s62, s46, 12
    s_add_u32 s62, s62, 16384
    v_add_u32 v44, s62, v44
    v_lshlrev_b32 v49, 4, v0
    s_waitcnt lgkmcnt(0)
    s_barrier
    buffer_store_dwordx4 v[128:131], v49, s[40:43], s67 offen""")
    for tok in range(2):
        for q in range(4): A("ds_read_b128 v[%d:%d], v44 offset:%d" % (132+16*tok+4*q, 135+16*tok+4*q, tok*2048+q*16))
    A("ds_read2_b32 v[50:51], v46 offset0:0 offset1:32\nds_read2_b32 v[52:53], v46 offset0:64 offset1:96")
    A("s_mov_b32 s73, 0x07060302\ns_mov_b32 s74, 0x%x" % fbits(1.0/448))
    for tok in range(2):
        b=132+16*tok
        A("s_waitcnt lgkmcnt(%d)" % (6-4*tok))
        for st in (8,4,2):
            for j in range(st): A("v_add_f32 v%d, v%d, v%d" % (b+j,b+j,b+j+st))
        A("""v_mul_f32 v{s}, s74, v{s}
        v_mul_f32 v{q}, s74, v{q}
        v_fma_f32 v{q}, -v{s}, v{s}, v{q}
        v_max_f32 v{q}, 0, v{q}
        v_cvt_pk_bf16_f32 v{f}, -v{s}, -v{s}
        v_cvt_pk_bf16_f32 v{q}, v{q}, v{q}
        v_and_b32 v{q}, s72, v{q}
        v_add_f32 v{q}, 0x{eps:x}, v{q}
        v_cvt_pk_bf16_f32 v{q}, v{q}, v{q}
        v_and_b32 v{q}, s72, v{q}
        v_sqrt_f32 v{q}, v{q}
        v_mov_b32 v{f1}, v{f}
        v_cvt_pk_bf16_f32 v{q}, v{q}, v{q}
        v_and_b32 v{d}, s72, v{q}
        v_rcp_f32 v{r}, v{d}
        v_mov_b32 v{f2}, v{f}
        v_mov_b32 v{f3}, v{f}""".format(s=b,q=b+1,f=180+4*tok,f1=181+4*tok,f2=182+4*tok,f3=183+4*tok,d=54+tok,r=56+tok,eps=fbits(1e-5)))
    A("s_waitcnt lgkmcnt(0)\nv_cmp_gt_u32 vcc, 32, v0\ns_nop 0")
    for hf in range(2):
        c0=50+2*hf; f=188+4*hf
        A("""v_add_f32 v{c}, v{c}, v{c1}
        v_cndmask_b32 v{c}, 0, v{c}, vcc
        v_and_b32 v58, s72, v{c}
        v_sub_f32 v59, v{c}, v58
        v_and_b32 v60, s72, v59
        v_sub_f32 v61, v59, v60
        v_perm_b32 v{f}, v60, v58, s73
        v_lshrrev_b32 v{f1}, 16, v61
        v_mov_b32 v{f2}, 0
        v_mov_b32 v{f3}, 0""".format(c=c0,c1=c0+1,f=f,f1=f+1,f2=f+2,f3=f+3))
    A("s_nop 1")
    for tok in range(2):
        for hf in range(2):
            acc=64+32*hf+16*tok
            A("v_mfma_f32_32x32x16_bf16 v[%d:%d], v[%d:%d], v[%d:%d], v[%d:%d]" % (acc,acc+15,188+4*hf,191+4*hf,180+4*tok,183+4*tok,acc,acc+15))
    A("s_lshl_b32 s75, s6, 2\ns_lshl_b32 s62, s46, 1\ns_add_u32 s75, s75, s62")
    A("s_cmp_ge_u32 s7, 14\ns_cbranch_scc1 k1_qkv")
    A("""v_mul_f32 v58, 0x%x, v56
    v_mul_f32 v59, 0x%x, v57
    s_mul_i32 s76, s75, %d
    s_lshl_b32 s62, s7, 2
    s_add_u32 s62, s62, s47
    s_lshl_b32 s62, s62, 11
    s_add_u32 s76, s76, s62
    s_add_u32 s76, s76, %d
    s_add_u32 s77, s76, %d
    s_nop 3""" % (fbits(-LOG2E), fbits(-LOG2E), 112*1024, HF_OFF, 112*1024))
    for tok in range(2):
        G=64+16*tok; U=96+16*tok
        for half in range(2):
            rs=range(8*half,8*half+8)
            for r in rs: A("v_mul_f32 v%d, v%d, v%d" % (G+r,G+r,58+tok))
            for r in rs: A("v_exp_f32 v%d, v%d" % (G+r,G+r))
            for r in rs: A("v_fma_f32 v%d, v%d, v%d, v%d" % (G+r,G+r,54+tok,54+tok))
            for r in rs: A("v_rcp_f32 v%d, v%d" % (G+r,G+r))
            for r in rs: A("v_mul_f32 v%d, v%d, v%d" % (U+r,U+r,G+r))
            o=128+8*tok+4*half
            for j in range(4): A("v_cvt_pk_bf16_f32 v%d, v%d, v%d" % (o+j,U+8*half+2*j,U+8*half+2*j+1))
            A("buffer_store_dwordx4 v[%d:%d], v49, s[40:43], s%d offen offset:%d" % (o,o+3,76+tok,half*1024))
    A("s_endpgm")
    A.label("k1_qkv")
    qs=LOG2E*28**-0.5
    A("""s_sub_u32 s76, s7, 14
    s_lshl_b32 s76, s76, 3
    s_add_u32 s76, s76, s47
    s_lshl_b32 s62, s75, 15
    v_lshlrev_b32 v62, 10, v6
    v_add_u32 v62, s62, v62
    v_mul_f32 v58, 0x%x, v56
    v_mul_f32 v59, 0x%x, v57
    s_mov_b32 s78, 32768
    s_nop 4""" % (fbits(qs), fbits(qs)))
    def qstore(hf):
        for q in range(4):
            A("""s_lshl_b32 s62, s76, 3
            s_add_u32 s62, s62, %d
            v_add_u32 v40, s62, v5
            v_mul_u32_u24 v41, 147, v40
            v_lshrrev_b32 v41, 10, v41
            v_mul_u32_u24 v42, 7, v41
            v_sub_u32 v42, v40, v42
            v_lshl_add_u32 v41, v41, 6, v62
            v_and_b32 v43, 4, v42
            v_lshl_add_u32 v41, v43, 3, v41
            v_and_b32 v43, 1, v42
            v_lshl_add_u32 v41, v43, 4, v41
            v_and_b32 v43, 2, v42
            v_lshl_add_u32 v41, v43, 2, v41""" % (32*hf+2*q))
            for tok in range(2):
                a0=64+32*hf+16*tok+4*q; o=128+16*hf+8*tok+2*q
                for j in range(4): A("v_mul_f32 v%d, v%d, v%d" % (a0+j,a0+j,58+tok))
                A("v_cvt_pk_bf16_f32 v%d, v%d, v%d\nv_cvt_pk_bf16_f32 v%d, v%d, v%d" % (o,a0,a0+1,o+1,a0+2,a0+3))
                A("buffer_store_dwordx2 v[%d:%d], v41, s[40:43], %s offen" % (o,o+1,"0" if tok==0 else "s78"))
    qstore(0)
    A("s_cmp_ge_u32 s76, 10\ns_cbranch_scc1 k1_kv")
    qstore(1)
    A("s_endpgm")
    A.label("k1_kv")
    A("""s_lshl_b32 s77, s75, 12
    s_add_u32 s77, s77, %d
    s_cmp_eq_u32 s76, 10
    s_cselect_b32 s79, 0x3f803f80, 0
    s_cselect_b32 s80, 0x3f80, 0
    s_or_b32 s79, s79, 0x3f80
    v_mov_b32 v40, s79
    v_mov_b32 v41, s80""" % KV_OFF)
    for tok in range(2):
        a0=96+16*tok; o=144+8*tok
        for j in range(16): A("v_mul_f32 v%d, v%d, v%d" % (a0+j,a0+j,56+tok))
        for j in range(8): A("v_cvt_pk_bf16_f32 v%d, v%d, v%d" % (o+j,a0+2*j,a0+2*j+1))
        A("v_cndmask_b32 v%d, v40, v%d, vcc\nv_cndmask_b32 v%d, v41, v%d, vcc" % (o+6,o+6,o+7,o+7))
    A("s_cmp_eq_u32 s76, 11\ns_cbranch_scc1 k1_v")
    A("s_add_u32 s78, s77, 4096")
    for tok in range(2):
        for sx in range(2):
            A("buffer_store_dwordx4 v[%d:%d], v49, s[40:43], s%d offen offset:%d" % (144+8*tok+4*sx,147+8*tok+4*sx,77+tok,sx*1024))
    A("s_endpgm")
    A.label("k1_v")
    A("""s_lshl_b32 s62, s46, 12
    s_add_u32 s62, s62, 32768
    v_lshlrev_b32 v42, 6, v6
    v_lshl_add_u32 v42, v5, 3, v42
    v_add_u32 v42, s62, v42
    v_add_u32 v43, s62, v32
    s_add_u32 s78, s77, 4096""")
    for tok in range(2):
        for q in range(4): A("ds_write_b64 v42, v[%d:%d] offset:%d" % (144+8*tok+2*q,145+8*tok+2*q,tok*2048+16*q))
    A("s_waitcnt lgkmcnt(0)")
    for tok in range(2):
        for sx in range(2):
            for z in range(2):
                o=64+8*tok+4*sx+2*z
                A("ds_read_b64_tr_b16 v[%d:%d], v43 offset:%d" % (o,o+1,tok*2048+sx*1024+z*512))
    A("s_waitcnt lgkmcnt(0)")
    for tok in range(2):
        for sx in range(2):
            o=64+8*tok+4*sx
            A("buffer_store_dwordx4 v[%d:%d], v49, s[40:43], s%d offen offset:%d" % (o,o+3,77+tok,2048+sx*1024))
    A.label("k1_done")
    A("s_endpgm")
    return kernel_desc(name, 196, 96)
```

```python
from asmlib import *
from k1 import *
K2_LDS=139520
GP=65536; FL=135168; MX=135424
MF="v_mfma_f32_32x32x16_bf16"
def r4(i): return "v[%d:%d]" % (i,i+3)
def r16(i): return "v[%d:%d]" % (i,i+15)
def gen_k2(A, name="k2_kernel"):
    kernel_head(A, name)
    A("s_cmp_ge_u32 s2, 256\ns_cbranch_scc1 k2_done")
    A("""s_load_dwordx2 s[8:9], s[0:1], 0
    s_load_dwordx2 s[24:25], s[0:1], 88
    v_readfirstlane_b32 s3, v0
    v_mov_b32 v1, v0
    v_and_b32 v0, 63, v0
    v_lshlrev_b32 v2, 4, v0
    v_lshrrev_b32 v5, 5, v0
    v_and_b32 v6, 31, v0
    s_lshr_b32 s3, s3, 6
    s_and_b32 s4, s2, 7
    s_lshl_b32 s4, s4, 2
    s_bfe_u32 s5, s2, 0x20003
    s_add_u32 s4, s4, s5
    s_lshr_b32 s5, s2, 5
    s_mov_b32 s72, 0xffff0000
    s_mov_b32 s73, 0x07060302
    s_mov_b32 s60, 0
    s_waitcnt lgkmcnt(0)""")
    srd(A, 28, 8, 2048*896)
    srd(A, 40, 24, WS_SIZE)
    A("s_cmp_ge_u32 s3, 4\ns_cbranch_scc1 k2_gemm")
    Q=lambda g,s: 16+8*g+4*s
    O=lambda g: 48+16*g
    S=lambda b: 112+16*b
    P=lambda b: 144+8*b
    KV=lambda st,j: 160+16*st+4*j
    A("""s_lshl_b32 s44, s2, 13
    v_lshlrev_b32 v3, 6, v6
    v_lshl_add_u32 v3, v5, 4, v3
    s_lshl_b32 s46, s3, 16
    s_add_u32 s46, s46, %d
    s_add_u32 s50, s46, 65536
    s_mov_b32 s47, %d""" % (KV_OFF, KV_OFF))
    A("buffer_load_dwordx4 %s, v2, s[40:43], s47 offen\nbuffer_load_dwordx4 %s, v2, s[40:43], s47 offen offset:1024" % (r4(KV(3,0)), r4(KV(3,1))))
    A("s_add_u32 s45, s44, 4096")
    for g in range(4):
        for s_ in range(2):
            A("buffer_load_dwordx4 %s, v3, s[40:43], s%d offen offset:%d" % (r4(Q(g,s_)), 44+g//2, (g%2)*2048+s_*32))
    def kvload(st): return ["buffer_load_dwordx4 %s, v2, s[40:43], s48 offen offset:%d" % (r4(KV(st,j)), j*1024) for j in range(4)] + ["s_add_u32 s48, s48, 4096\ns_cmp_lt_u32 s48, s50\ns_cselect_b32 s48, s48, 0x7fff0000"]
    def xload():
        A("""v_lshrrev_b32 v7, 3, v1
        s_lshl_b32 s61, s4, 6
        v_add_u32 v7, s61, v7
        v_and_b32 v8, 7, v1
        s_lshl_b32 s61, s5, 3
        v_add_u32 v8, s61, v8
        v_mul_u32_u24 v9, 896, v7
        v_lshl_add_u32 v9, v8, 4, v9
        buffer_load_dwordx4 v[240:243], v9, s[28:31], 0 offen""")
    A("s_mov_b32 s48, s46")
    for t in range(3):
        for x in kvload(t): A(x)
    xload()
    def zero_mslots():
        A("s_mov_b32 exec_lo, 0")
        for g in range(4): A("v_mov_b32 v%d, 0\nv_mov_b32 v%d, 0" % (Q(g,1)+2, Q(g,1)+3))
        A("s_mov_b32 exec_lo, -1")
    def patch(g, m, off):
        A("""v_sub_f32 v10, %s, v%d
        v_and_b32 v11, s72, v10
        v_sub_f32 v10, v10, v11
        v_and_b32 v12, s72, v10
        v_sub_f32 v10, v10, v12
        s_mov_b32 exec_lo, 0
        v_perm_b32 v%d, v12, v11, s73
        v_lshrrev_b32 v%d, 16, v10
        s_mov_b32 exec_lo, -1""" % (off, m, Q(g,1)+2, Q(g,1)+3))
    def max16(dst, b, first):
        if first: A("v_max_f32 v%d, v%d, v%d" % (dst, b, b+1))
        else: A("v_max3_f32 v%d, v%d, v%d, v%d" % (dst, dst, b, b+1))
        for j in range(2,16,2): A("v_max3_f32 v%d, v%d, v%d, v%d" % (dst, dst, b+j, b+j+1))
    def xhalf(m): A("v_mov_b32 v10, v%d\ns_nop 1\nv_permlane32_swap_b32 v%d, v10\ns_nop 0\nv_max_f32 v%d, v%d, v10" % (m,m,m,m))
    A("s_waitcnt vmcnt(13)")
    zero_mslots()
    A("s_nop 1")
    for g in range(4):
        A("%s %s, %s, %s, 0" % (MF, r16(O(g)), r4(KV(3,0)), r4(Q(g,0))))
        A("%s %s, %s, %s, %s" % (MF, r16(O(g)), r4(KV(3,1)), r4(Q(g,1)), r16(O(g))))
    A("s_nop 7")
    for g in range(4):
        max16(224+g, O(g), True); xhalf(224+g); patch(g, 224+g, "0xc2800000")
    A.label("k2_rerun")
    for r in range(48,112): A("v_mov_b32 v%d, 0" % r)
    for r in list(range(P(1),P(1)+8))+list(range(KV(3,2),KV(3,2)+8)): A("v_mov_b32 v%d, 0" % r)
    A("s_waitcnt vmcnt(8)\ns_mov_b32 s49, 0")
    A("%s %s, %s, %s, 0" % (MF, r16(S(0)), r4(KV(0,0)), r4(Q(0,0))))
    A("%s %s, %s, %s, %s" % (MF, r16(S(0)), r4(KV(0,1)), r4(Q(0,1)), r16(S(0))))
    A("s_nop 11")
    A.raw(".p2align 6"); A.label("k2_loop")
    for u in range(16):
        t,g=divmod(u,4); tn,gn=divmod((u+1)%16,4); tp_,gp=divmod((u-1)%16,4)
        b=u%2; s0=S(b); s1=S(1-b)
        if g==3: A("s_waitcnt vmcnt(8)")
        M=["%s %s, %s, %s, 0" % (MF, r16(s1), r4(KV(tn,0)), r4(Q(gn,0))),
           "%s %s, %s, %s, %s" % (MF, r16(s1), r4(KV(tn,1)), r4(Q(gn,1)), r16(s1)),
           "%s %s, %s, %s, %s" % (MF, r16(O(gp)), r4(KV(tp_,2)), r4(P(1-b)), r16(O(gp))),
           "%s %s, %s, %s, %s" % (MF, r16(O(gp)), r4(KV(tp_,3)), r4(P(1-b)+4), r16(O(gp)))]
        e=lambda j: "v_exp_f32 v%d, v%d" % (s0+j,s0+j)
        c=lambda j: "v_cvt_pk_bf16_f32 v%d, v%d, v%d" % (P(b)+j,s0+2*j,s0+2*j+1)
        ld=kvload((t+3)%4) if g==1 else [None]*5
        for qd in range(4):
            A(M[qd])
            if ld[qd]: A(ld[qd])
            if qd: A(c(2*qd-1))
            for j in range(4*qd,4*qd+4): A(e(j))
            A(c(2*qd))
        if ld[4]: A(ld[4])
        A(c(7))
    A("s_add_u32 s49, s49, 1\ns_cmp_lt_u32 s49, 4\ns_cbranch_scc1 k2_loop")
    A("%s %s, %s, %s, %s" % (MF, r16(O(3)), r4(KV(3,2)), r4(P(1)), r16(O(3))))
    A("%s %s, %s, %s, %s" % (MF, r16(O(3)), r4(KV(3,3)), r4(P(1)+4), r16(O(3))))
    A("s_lshl_b32 s61, s3, 14\nv_add_u32 v10, s61, v2\ns_mov_b32 s62, 0x5e800000")
    for g in range(4):
        if g==3: A("s_nop 3")
        for q in range(4): A("ds_write_b128 v10, %s offset:%d" % (r4(O(g)+4*q), g*4096+q*1024))
    A("""v_add_f32 v11, v%d, v%d
    v_add_f32 v12, v%d, v%d
    v_add_f32 v11, v11, v12
    v_cmp_nge_f32 vcc, s62, v11
    s_lshl_b32 s61, s3, 2
    s_add_u32 s61, s61, %d
    v_mov_b32 v12, s61
    s_nop 0
    v_mov_b32 v11, vcc_hi
    ds_write_b32 v12, v11
    s_branch k2_join""" % (O(0)+12,O(1)+12,O(2)+12,O(3)+12,FL))
    A.label("k2_fb_att")
    A("s_waitcnt vmcnt(0)")
    zero_mslots()
    A("s_mov_b32 s48, s46\ns_mov_b32 s49, 0")
    for g in range(4): A("v_mov_b32 v%d, 0xff800000" % (224+g))
    A.label("k2_fb_loop")
    A("buffer_load_dwordx4 %s, v2, s[40:43], s48 offen\nbuffer_load_dwordx4 %s, v2, s[40:43], s48 offen offset:1024\ns_add_u32 s48, s48, 4096\ns_waitcnt vmcnt(0)" % (r4(KV(3,0)), r4(KV(3,1))))
    for g in range(4):
        A("%s %s, %s, %s, 0" % (MF, r16(O(g)), r4(KV(3,0)), r4(Q(g,0))))
        A("%s %s, %s, %s, %s" % (MF, r16(O(g)), r4(KV(3,1)), r4(Q(g,1)), r16(O(g))))
    A("s_nop 7")
    for g in range(4): max16(224+g, O(g), False)
    A("s_add_u32 s49, s49, 1\ns_cmp_lt_u32 s49, 16\ns_cbranch_scc1 k2_fb_loop")
    for g in range(4): xhalf(224+g)
    A("s_lshl_b32 s61, s3, 10\ns_add_u32 s61, s61, %d\nv_add_u32 v13, s61, v2\nds_write_b128 v13, v[224:227]\ns_mov_b32 s48, s46" % MX)
    for t in range(3):
        for x in kvload(t): A(x)
    A("s_waitcnt lgkmcnt(0)\ns_barrier\nv_add_u32 v13, %d, v2" % MX)
    for w in range(4): A("ds_read_b128 %s, v13 offset:%d" % (r4(112+4*w), w*1024))
    A("s_waitcnt lgkmcnt(0)")
    for g in range(4):
        A("v_max3_f32 v%d, v%d, v%d, v%d\nv_max_f32 v%d, v%d, v%d" % (224+g,112+g,116+g,120+g,224+g,224+g,124+g))
        patch(g, 224+g, "0")
    A("s_branch k2_rerun")
    A.label("k2_gemm")
    xload()
    A("s_cmp_ge_u32 s5, 7\ns_cbranch_scc1 k2_join")
    A("""s_sub_u32 s61, s3, 4
    s_mul_i32 s61, s61, %d
    s_mul_i32 s44, s4, %d
    s_add_u32 s44, s44, s61
    s_add_u32 s44, s44, %d
    s_add_u32 s45, s44, %d
    s_mul_i32 s46, s5, %d
    s_add_u32 s46, s46, s61
    s_add_u32 s46, s46, %d
    s_add_u32 s47, s46, %d""" % (28*1024, 2*112*1024, HF_OFF, 112*1024, 2*140*1024, WF_OFF+28*1024, 140*1024))
    NS=8
    F=lambda st,j: 112+16*st+4*j
    def gload(k):
        L=["buffer_load_dwordx4 %s, v2, s[40:43], s%d offen offset:%d" % (r4(F(k%NS,j)), 44+j, (k%4)*1024) for j in range(4)]
        if k%4==3: L+=["s_add_u32 s%d, s%d, 4096" % (44+j,44+j) for j in range(4)]
        return L
    for k in range(NS-1):
        for x in gload(k): A(x)
    for k in range(28):
        nl=min(27,k+NS-2)-k
        A("s_waitcnt vmcnt(%d)" % (4*nl))
        st=k%NS
        for ct in range(2):
            for tok in range(2):
                acc=48+32*ct+16*tok
                A("%s %s, %s, %s, %s" % (MF, r16(acc), r4(F(st,2+ct)), r4(F(st,tok)), r16(acc) if k else "0"))
        if k+NS-1<28:
            for x in gload(k+NS-1): A(x)
    A("""s_sub_u32 s61, s3, 4
    s_mul_i32 s61, s61, %d
    s_add_u32 s61, s61, %d
    v_mul_u32_u24 v10, 272, v6
    v_lshl_add_u32 v10, v5, 4, v10
    v_add_u32 v10, s61, v10
    s_nop 7""" % (64*272, GP))
    for ct in range(2):
        for tok in range(2):
            for q in range(4): A("ds_write_b128 v10, %s offset:%d" % (r4(48+32*ct+16*tok+4*q), tok*32*272+ct*128+q*32))
    A.label("k2_join")
    A("s_waitcnt vmcnt(0) lgkmcnt(0)\ns_barrier\nv_mov_b32 v10, %d\nds_read_b128 v[12:15], v10" % FL)
    A("""s_lshl_b32 s61, s3, 11
    v_add_u32 v10, s61, v2
    s_lshr_b32 s62, s3, 1
    s_lshl_b32 s61, s62, 12
    s_add_u32 s61, s61, %d
    v_lshlrev_b32 v11, 4, v6
    v_add_u32 v11, s61, v11""" % (3*1024+512))
    for w in range(4):
        A("ds_read_b32 v%d, v11 offset:%d" % (244+w, w*16384))
    for w in range(4):
        for q in range(2): A("ds_read_b128 %s, v10 offset:%d" % (r4(112+8*w+4*q), w*16384+q*1024))
    A("""s_waitcnt lgkmcnt(12)
    v_or_b32 v12, v12, v13
    v_or3_b32 v12, v12, v14, v15
    s_nop 0
    v_readfirstlane_b32 s63, v12
    s_nop 0
    s_cmp_lg_u32 s63, 0
    s_cselect_b32 s63, 1, 0
    s_cmp_gt_u32 s63, s60
    s_cbranch_scc0 k2_ok
    s_mov_b32 s60, 1
    s_waitcnt lgkmcnt(0)
    s_cmp_lt_u32 s3, 4
    s_cbranch_scc1 k2_fb_att
    s_barrier
    s_branch k2_join""")
    A.label("k2_ok")
    A("""v_lshrrev_b32 v13, 3, v1
    v_mul_u32_u24 v13, 272, v13
    v_and_b32 v14, 7, v1
    v_lshl_add_u32 v13, v14, 5, v13
    v_add_u32 v13, %d, v13""" % GP)
    A("s_waitcnt lgkmcnt(8)\nv_add_f32 v244, v244, v245\nv_add_f32 v246, v246, v247\nv_add_f32 v244, v244, v246\nv_rcp_f32 v244, v244\ns_waitcnt lgkmcnt(0)")
    for w in range(4):
        for z in range(2): A("ds_read_b128 %s, v13 offset:%d" % (r4(160+8*w+4*z), w*64*272+z*16))
    for j in range(8): A("v_add_f32 v%d, v%d, v%d\nv_add_f32 v%d, v%d, v%d" % (112+j,112+j,120+j,128+j,128+j,136+j))
    for j in range(8): A("v_add_f32 v%d, v%d, v%d" % (112+j,112+j,128+j))
    for j in range(8): A("v_mul_f32 v%d, v%d, v244" % (112+j,112+j))
    for j in range(4): A("v_cvt_pk_bf16_f32 v%d, v%d, v%d" % (120+j,112+2*j,113+2*j))
    A("""s_and_b32 s61, s2, 3
    s_lshl_b32 s61, s61, 3
    s_lshl_b32 s62, s62, 1
    s_add_u32 s61, s61, s62
    v_lshrrev_b32 v10, 4, v6
    v_add_u32 v10, s61, v10
    v_lshlrev_b32 v10, 4, v10
    s_lshr_b32 s64, s2, 2
    s_mul_i32 s64, s64, 28672
    s_add_u32 s64, s64, %d
    v_and_b32 v11, 15, v0
    v_mul_u32_u24 v11, 7, v11
    s_and_b32 s61, s3, 1
    s_lshl_b32 s61, s61, 2
    v_add_u32 v12, s61, v5""" % OF_OFF)
    for q in range(2):
        A("""v_add_u32 v14, %d, v12
        v_add_u32 v15, v11, v14
        v_cmp_eq_u32 vcc, 7, v14
        v_lshrrev_b32 v124, 2, v15
        v_lshl_add_u32 v124, v124, 10, v10
        v_and_b32 v125, 1, v15
        v_lshl_add_u32 v124, v125, 9, v124
        v_and_b32 v125, 2, v15
        v_lshl_add_u32 v124, v125, 2, v124
        v_mov_b32 v125, 0x7fff0000
        v_cndmask_b32 v124, v124, v125, vcc
        buffer_store_dwordx2 v[%d:%d], v124, s[40:43], s64 offen""" % (2*q, 120+2*q, 121+2*q))
    A("s_cmp_ge_u32 s5, 7\ns_cbranch_scc1 k2_done")
    A("s_waitcnt vmcnt(2) lgkmcnt(0)")
    for j in range(8): A("v_add_f32 v%d, v%d, v%d\nv_add_f32 v%d, v%d, v%d" % (160+j,160+j,168+j,176+j,176+j,184+j))
    for j in range(4): A("v_lshlrev_b32 v%d, 16, v%d\nv_and_b32 v%d, s72, v%d" % (168+2*j,240+j,169+2*j,240+j))
    for j in range(8): A("v_add_f32 v%d, v%d, v%d" % (160+j,160+j,176+j))
    for j in range(8): A("v_add_f32 v%d, v%d, v%d" % (160+j,160+j,168+j))
    A("v_lshlrev_b32 v9, 1, v9\ns_mov_b32 s64, %d" % XB_OFF)
    A("buffer_store_dwordx4 v[160:163], v9, s[40:43], s64 offen\nbuffer_store_dwordx4 v[164:167], v9, s[40:43], s64 offen offset:16")
    A.label("k2_done")
    A("s_endpgm")
    return kernel_desc(name, 256, 96)
```

```python
from asmlib import *
from k1 import *
from k2 import MF, r4, r16
K3_GRID=224; K3_BLOCK=256; K3_LDS=4*64*272
def gen_k3(A, name="k3_kernel"):
    kernel_head(A, name)
    A("s_cmp_ge_u32 s2, 224\ns_cbranch_scc1 k3_done")
    A("""s_load_dwordx2 s[8:9], s[0:1], 72
    s_load_dwordx2 s[24:25], s[0:1], 88
    v_readfirstlane_b32 s3, v0
    v_mov_b32 v1, v0
    v_and_b32 v0, 63, v0
    v_lshlrev_b32 v2, 4, v0
    v_lshrrev_b32 v5, 5, v0
    v_and_b32 v6, 31, v0
    s_lshr_b32 s3, s3, 6
    s_and_b32 s4, s2, 7
    s_lshl_b32 s4, s4, 2
    s_bfe_u32 s5, s2, 0x20003
    s_add_u32 s4, s4, s5
    s_lshr_b32 s5, s2, 5
    s_mul_i32 s61, s3, %d
    s_mul_i32 s44, s4, %d
    s_add_u32 s44, s44, s61
    s_add_u32 s44, s44, %d
    s_add_u32 s45, s44, %d
    s_mul_i32 s46, s5, %d
    s_add_u32 s46, s46, s61
    s_add_u32 s46, s46, %d
    s_add_u32 s47, s46, %d
    s_waitcnt lgkmcnt(0)""" % (7*1024, 2*28*1024, OF_OFF, 28*1024, 2*140*1024, WF_OFF, 140*1024))
    srd(A, 28, 8, 2048*896)
    srd(A, 40, 24, WS_SIZE)
    F=lambda st,j: 112+16*st+4*j
    for k in range(7):
        for j in range(4): A("buffer_load_dwordx4 %s, v2, s[40:43], s%d offen offset:%d" % (r4(F(k,j)), 44+j, (k%4)*1024))
        if k==3:
            for j in range(4): A("s_add_u32 s%d, s%d, 4096" % (44+j,44+j))
    A("""v_lshrrev_b32 v7, 3, v1
    s_lshl_b32 s61, s4, 6
    v_add_u32 v8, s61, v7
    v_and_b32 v11, 7, v1
    s_lshl_b32 s61, s5, 3
    v_add_u32 v12, s61, v11
    v_mul_u32_u24 v9, 896, v8
    v_lshl_add_u32 v9, v12, 4, v9
    v_lshlrev_b32 v13, 1, v9
    s_mov_b32 s64, %d
    s_mov_b32 s65, %d
    s_mov_b32 s66, %d""" % (XB_OFF, XB_OFF+32*1792, 32*896))
    for p in range(2):
        for z in range(2): A("buffer_load_dwordx4 %s, v13, s[40:43], s%d offen offset:%d" % (r4(16+8*p+4*z), 64+p, z*16))
    for k in range(7):
        A("s_waitcnt vmcnt(%d)" % (4*(6-k)+4))
        for ct in range(2):
            for tok in range(2):
                acc=48+32*ct+16*tok
                A("%s %s, %s, %s, %s" % (MF, r16(acc), r4(F(k,2+ct)), r4(F(k,tok)), r16(acc) if k else "0"))
    A("""s_mul_i32 s61, s3, %d
    v_mul_u32_u24 v10, 272, v6
    v_lshl_add_u32 v10, v5, 4, v10
    v_add_u32 v10, s61, v10
    v_mul_u32_u24 v14, 272, v7
    v_lshl_add_u32 v14, v11, 5, v14
    s_nop 7""" % (64*272))
    for ct in range(2):
        for tok in range(2):
            for q in range(4): A("ds_write_b128 v10, %s offset:%d" % (r4(48+32*ct+16*tok+4*q), tok*32*272+ct*128+q*32))
    A("s_waitcnt lgkmcnt(0)\ns_barrier")
    for p in range(2):
        for w in range(4):
            for z in range(2): A("ds_read_b128 %s, v14 offset:%d" % (r4(112+32*p+8*w+4*z), w*64*272+p*32*272+z*16))
    A("s_waitcnt vmcnt(0)")
    for p in range(2):
        b=112+32*p
        A("s_waitcnt lgkmcnt(%d)" % (8-8*p))
        for j in range(8): A("v_add_f32 v%d, v%d, v%d\nv_add_f32 v%d, v%d, v%d" % (b+j,b+j,b+8+j,b+16+j,b+16+j,b+24+j))
        for j in range(8): A("v_add_f32 v%d, v%d, v%d" % (b+j,b+j,16+8*p+j))
        for j in range(8): A("v_add_f32 v%d, v%d, v%d" % (b+j,b+j,b+16+j))
        for j in range(4): A("v_cvt_pk_bf16_f32 v%d, v%d, v%d" % (b+8+j,b+2*j,b+2*j+1))
        A("buffer_store_dwordx4 %s, v9, s[28:31], %s offen" % (r4(b+8), "s66" if p else "0"))
    A.label("k3_done")
    A("s_endpgm")
    return kernel_desc(name, 224, 96)
```

```python
import sys
from asmlib import *
import k1
ks = sys.argv[2].split(",") if len(sys.argv) > 2 else ["1","2"]
A = Asm(); hdr = []; descs = ""
ref = open("parallel_sum__grouped_kv_mqa__glu_gated_glu__prompt.s.ref").read().split("\n")
head = [l for l in ref if l.startswith(";") and "@launch" not in l and "Override" not in l and "grid=ceil" not in l][:13]
if "1" in ks:
    descs += k1.gen_k1(A); hdr.append("; @launch kernel=k1_kernel grid=(256,1,1) block=(512,1,1) lds=%d" % k1.K1_LDS)
if "2" in ks:
    import k2
    descs += k2.gen_k2(A); hdr.append("; @launch kernel=k2_kernel grid=(256,1,1) block=(%d,1,1) lds=%d" % (k2.K2_BLOCK, k2.K2_LDS))
if "3" in ks:
    import k3
    descs += k3.gen_k3(A); hdr.append("; @launch kernel=k3_kernel grid=(%d,1,1) block=(%d,1,1) lds=%d" % (k3.K3_GRID, k3.K3_BLOCK, k3.K3_LDS))
open(sys.argv[1], "w").write("\n".join(head + hdr) + '\n.amdgcn_target "amdgcn-amd-amdhsa--gfx950"\n' + A.text() + descs)
```

```python
class Asm:
    def __init__(self): self.l = []; self.uid = 0
    def __call__(self, s):
        for x in s.strip("\n").split("\n"): self.l.append("    " + x.strip())
    def label(self, n): self.l.append(n + ":")
    def raw(self, s): self.l.append(s)
    def newlabel(self, p="L"):
        self.uid += 1; return "%s_%d" % (p, self.uid)
    def text(self): return "\n".join(self.l) + "\n"
def v(i, n=1): return "v%d" % i if n == 1 else "v[%d:%d]" % (i, i + n - 1)
def a(i, n=1): return "a%d" % i if n == 1 else "a[%d:%d]" % (i, i + n - 1)
def s(i, n=1): return "s%d" % i if n == 1 else "s[%d:%d]" % (i, i + n - 1)
def kernel_head(A, name):
    A.raw(".text"); A.raw(".globl %s" % name); A.raw(".p2align 8"); A.raw(".type %s,@function" % name); A.label(name)
def kernel_desc(name, vgpr, sgpr=102, accum=None):
    if accum is None: accum = (vgpr + 3) // 4 * 4
    return """.section .rodata,"a"
.p2align 6
.amdhsa_kernel %s
  .amdhsa_next_free_vgpr %d
  .amdhsa_next_free_sgpr %d
  .amdhsa_accum_offset %d
  .amdhsa_group_segment_fixed_size 0
  .amdhsa_kernarg_size 96
  .amdhsa_user_sgpr_count 2
  .amdhsa_user_sgpr_kernarg_segment_ptr 1
  .amdhsa_system_sgpr_workgroup_id_x 1
  .amdhsa_float_denorm_mode_32 3
.end_amdhsa_kernel
""" % (name, vgpr, sgpr, min(accum, 256))
def srd(A, d, b, nbytes):
    A("s_mov_b32 s%d, s%d\ns_and_b32 s%d, s%d, 0xffff\ns_mov_b32 s%d, 0x%x\ns_mov_b32 s%d, 0x00020000" % (d, b, d + 1, b + 1, d + 2, nbytes, d + 3))
import os
STAMP = int(os.environ.get("STAMP", "0"))
def stamp(A, n):
    if STAMP: A("s_memtime s[%d:%d]" % (84 + 2 * n, 85 + 2 * n))
def stamp_rt(A, n):
    if STAMP: A("s_memrealtime s[%d:%d]" % (84 + 2 * n, 85 + 2 * n))
def stamp_out(A, n, wave_sgpr=3, kidx=0):
    if not STAMP: return
    L = A.newlabel("st")
    A("s_waitcnt vmcnt(0)\ns_memtime s[96:97]\ns_memrealtime s[100:101]\ns_load_dwordx2 s[82:83], s[0:1], 80\ns_waitcnt lgkmcnt(0)")
    A("s_lshl_b32 s81, s2, 3\ns_add_u32 s81, s81, s%d\ns_lshl_b32 s81, s81, 3\ns_add_u32 s81, s81, %d\nv_mov_b32 v1, s81\nv_mov_b32 v2, s98\nv_mov_b32 v3, s100\nglobal_store_dwordx2 v1, v[2:3], s[24:25]" % (wave_sgpr, 0x1200000 + kidx * 16384))
    A("s_cmp_lg_u32 s2, %d\ns_cbranch_scc1 %s" % (STAMP - 1, L))
    A("s_lshl_b32 s81, s%d, 5\nv_mov_b32 v1, s81" % wave_sgpr)
    for i in range(1, 7):
        A("s_sub_u32 s81, s%d, s84\nv_mov_b32 v2, s81\nglobal_store_dword v1, v2, s[82:83] offset:%d" % (84 + 2 * i, 4 * (i - 1)))
    A("s_sub_u32 s81, s100, s98\nv_mov_b32 v2, s81\nglobal_store_dword v1, v2, s[82:83] offset:28")
    A.label(L)
```

```python
from asmlib import *
QS_OFF=0; KV_OFF=0x200000; WF_OFF=0x240000; OF_OFF=0x440000; XB_OFF=0x640000; HF_OFF=0xA00000; WS_SIZE=0x1100000
LOG2E=1.4426950408889634
import struct, os
def fbits(x): return struct.unpack("<I", struct.pack("<f", x))[0]
K1_LDS=155648
RDS=int(os.environ.get("RDS","2"))
SC=os.environ.get("SC"," sc1")
MF="v_mfma_f32_32x32x16_bf16"
def r4(i): return "v[%d:%d]" % (i,i+3)
def r16(i): return "v[%d:%d]" % (i,i+15)
def interleave(main, fill):
    out=[]; n=len(main); k=0
    for i,m in enumerate(main):
        out.append(m)
        tgt=(len(fill)*(i+1)+n-1)//n
        while k<tgt: out.append(fill[k]); k+=1
    return out
def merge(a, b):
    out=[]; i=j=0
    while i<len(a) or j<len(b):
        if j>=len(b) or (i<len(a) and i*len(b)<=j*len(a)): out.append(a[i]); i+=1
        else: out.append(b[j]); j+=1
    return out
def gen_k1(A, name="k1_kernel", sentinel=False):
    WB=49152; TS=147456
    kernel_head(A, name)
    A("s_cmp_ge_u32 s2, 256\ns_cbranch_scc1 k1_done")
    stamp(A,0); stamp_rt(A,7)
    A("""s_load_dwordx8 s[8:15], s[0:1], 0
    s_load_dwordx4 s[20:23], s[0:1], 48
    s_load_dwordx2 s[16:17], s[0:1], 32
    s_load_dwordx2 s[18:19], s[0:1], 64
    s_load_dwordx2 s[24:25], s[0:1], 88
    v_readfirstlane_b32 s3, v0
    v_and_b32 v0, 63, v0
    s_and_b32 s4, s2, 7
    s_lshr_b32 s5, s2, 3
    s_lshr_b32 s3, s3, 6
    s_and_b32 s6, s4, 1
    s_lshl_b32 s6, s6, 3
    s_and_b32 s7, s5, 7
    s_add_u32 s6, s6, s7
    s_lshr_b32 s7, s4, 1
    s_lshl_b32 s7, s7, 2
    s_lshr_b32 s5, s5, 3
    s_add_u32 s7, s7, s5
    s_lshr_b32 s44, s3, 2
    s_and_b32 s45, s3, 3
    s_and_b32 s46, s3, 1
    s_lshr_b32 s47, s3, 1
    s_lshl_b32 s48, s46, 1
    s_xor_b32 s48, s47, s48
    v_lshrrev_b32 v1, 4, v0
    v_bfe_u32 v2, v0, 2, 2
    v_and_b32 v3, 3, v0
    v_xor_b32 v4, v2, v1
    v_lshrrev_b32 v5, 5, v0
    v_and_b32 v6, 31, v0
    s_lshl_b32 s49, s3, 4
    v_lshrrev_b32 v7, 3, v0
    v_add_u32 v7, s49, v7
    v_mul_u32_u24 v8, 896, v7
    v_and_b32 v10, 7, v0
    v_xor_b32 v11, v10, v1
    v_lshl_add_u32 v8, v11, 4, v8
    v_xor_b32 v9, 64, v8
    v_add_u32 v9, 7168, v9""")
    A("""s_lshl_b32 s50, s7, 8
    s_sub_u32 s51, s7, 14
    s_lshl_b32 s51, s51, 9
    s_lshl_b32 s52, s44, 8
    s_add_u32 s51, s51, s52
    s_cmp_lt_u32 s7, 14
    s_movk_i32 s53, 896
    s_cselect_b32 s53, 3584, s53
    s_cselect_b32 s50, s50, s51
    s_lshl_b32 s57, s7, 1
    s_add_u32 s57, s57, s44
    s_cmp_eq_u32 s57, 31
    s_cselect_b32 s57, 2, 100
    v_mov_b32 v13, s53
    v_lshlrev_b32 v20, 6, v4
    v_add_u32 v20, s50, v20
    v_cmp_le_u32 vcc, s57, v4
    v_mov_b32 v17, 0
    v_mov_b32 v19, 0
    v_mov_b32 v21, 56
    v_cndmask_b32 v13, v13, v21, vcc
    v_cndmask_b32 v20, v20, v17, vcc
    s_lshl_b32 s58, s45, 4
    v_add_u32 v21, s58, v1
    v_mul_lo_u32 v21, v21, v13
    v_add_u32 v20, v20, v21
    v_lshl_add_u32 v16, v3, 4, v20
    v_cmp_eq_u32 s[70:71], s57, v4
    s_mul_i32 s59, s6, %d
    s_lshl_b32 s60, s3, 11
    s_mul_i32 s61, s45, 24576
    s_lshl_b32 s62, s44, 12
    s_add_u32 s61, s61, s62
    s_add_u32 s61, s61, %d
    s_waitcnt lgkmcnt(0)
    s_cmp_eq_u32 s44, 0
    s_cselect_b32 s32, s20, s22
    s_cselect_b32 s33, s21, s23
    s_cmp_lt_u32 s7, 14
    s_cselect_b32 s32, s32, s10
    s_cselect_b32 s33, s33, s11
    v_mov_b32 v14, s32
    v_mov_b32 v15, s33
    v_mov_b32 v21, s14
    v_mov_b32 v22, s15
    v_cndmask_b32 v14, v14, v21, vcc
    v_cndmask_b32 v15, v15, v22, vcc
    v_mov_b32 v21, s12
    v_mov_b32 v22, s13
    v_cndmask_b32 v14, v14, v21, s[70:71]
    v_cndmask_b32 v15, v15, v22, s[70:71]
    v_lshl_add_u64 v[14:15], v[16:17], 0, v[14:15]
    v_lshlrev_b32 v16, 2, v13
    v_mul_u32_u24 v18, 52, v13""" % (128*896, WB))
    srd(A, 28, 8, 2048*896)
    def dma(c):
        st=c%3; L=[]
        for p in range(4):
            L.append("s_add_u32 m0, s61, %d\ns_nop 0\nglobal_load_lds_dwordx4 v[14:15], off\nv_lshl_add_u64 v[14:15], v[%d:%d], 0, v[14:15]" % (st*8192+p*1024, 18 if p==3 else 16, 19 if p==3 else 17))
            if p%2==0:
                e=p//2
                L.append("s_add_u32 m0, s60, %d\ns_nop 0\nbuffer_load_dwordx4 v%d, s[28:31], s59 offen lds%s" % (st*16384+e*1024, 8+e, "\ns_add_u32 s59, s59, 128" if e else ""))
        return L
    for c in range(2):
        for x in dma(c): A(x)
    stamp(A,1)
    srd(A, 40, 24, WS_SIZE)
    A("""s_lshl_b32 s63, s2, 3
    s_add_u32 s63, s63, s3
    s_mul_i32 s64, s63, 4682
    s_lshr_b32 s64, s64, 16
    s_mul_i32 s65, s64, 14
    s_sub_u32 s65, s63, s65
    s_mul_i32 s54, s64, 1821
    s_lshr_b32 s54, s54, 16
    s_mul_i32 s55, s54, 36
    s_sub_u32 s55, s64, s55
    s_mul_i32 s66, s54, 28
    s_add_u32 s66, s66, s55
    s_lshl_b32 s66, s66, 4
    s_sub_u32 s56, s55, 28
    s_lshr_b32 s58, s56, 1
    s_lshl_b32 s54, s54, 2
    s_add_u32 s58, s58, s54
    s_mul_i32 s58, s58, 28
    s_and_b32 s56, s56, 1
    s_lshl_b32 s54, s56, 4
    s_add_u32 s58, s58, s54
    s_lshl_b32 s56, s56, 4
    s_sub_u32 s56, 64, s56
    s_cmp_lt_u32 s55, 28
    s_cselect_b32 s36, s18, s16
    s_cselect_b32 s37, s19, s17
    s_mov_b32 s38, %d
    s_cselect_b32 s38, %d, s38
    s_cselect_b32 s66, s66, s58
    s_cselect_b32 s56, 64, s56
    s_and_b32 s37, s37, 0xffff
    s_mov_b32 s39, 0x00020000
    s_mul_i32 s66, s66, 896
    s_lshl_b32 s67, s65, 6
    s_add_u32 s66, s66, s67
    s_mul_i32 s67, s65, 144
    s_add_u32 s67, s67, s64
    s_lshl_b32 s67, s67, 10
    s_add_u32 s67, s67, %d
    s_cmp_lt_u32 s63, 2016
    s_cselect_b32 s67, s67, 0x7fff0000
    v_cmp_gt_u32 vcc, s56, v0
    v_lshrrev_b32 v21, 2, v0
    v_mul_u32_u24 v21, 896, v21
    v_lshl_add_u32 v21, v3, 4, v21
    v_mov_b32 v22, 0x7fff0000
    v_cndmask_b32 v21, v22, v21, vcc
    s_lshl_b32 s68, s3, 10
    s_add_u32 s68, s68, %d
    s_mov_b32 m0, s68
    v_lshlrev_b32 v49, 4, v0
    buffer_load_dwordx4 v21, s[36:39], s66 offen lds""" % (448*896, 1792*896, WF_OFF, TS))
    A("""s_lshl_b32 s62, s63, 10
    s_add_u32 s62, s62, %d
    v_mov_b32 v228, -1
    v_mov_b32 v229, -1
    v_mov_b32 v230, -1
    v_mov_b32 v231, -1
    buffer_store_dwordx4 v[228:231], v49, s[40:43], s62 offen%s""" % (OF_OFF, SC))
    A("""v_bfe_u32 v20, v0, 1, 3
    v_xor_b32 v20, v20, v5
    v_lshlrev_b32 v20, 4, v20
    v_lshl_add_u32 v20, v6, 7, v20
    s_lshl_b32 s62, s46, 13
    v_add_u32 v20, s62, v20
    v_lshl_add_u32 v21, v5, 3, v2
    v_lshlrev_b32 v21, 8, v21
    v_xor_b32 v22, s47, v2
    v_lshl_add_u32 v21, v22, 6, v21
    v_and_b32 v22, 1, v1
    v_lshlrev_b32 v22, 5, v22
    v_lshl_add_u32 v22, v3, 3, v22
    v_add_u32 v21, v21, v22
    v_lshl_add_u32 v32, v5, 2, v2
    v_lshl_add_u32 v32, v32, 6, v22
    v_add_u32 v48, s68, v32""")
    for i in range(4):
        A("""s_xor_b32 s62, s48, %d
        s_lshl_b32 s69, s62, 5
        v_xor_b32 v%d, s69, v20
        s_mul_i32 s62, s62, 24576
        s_add_u32 s62, s62, %d
        v_add_u32 v%d, s62, v21""" % (i, 24+i, WB, 28+i))
    for r in range(36,40): A("v_mov_b32 v%d, 0" % r)
    A("""v_mov_b32 v33, 0x3f803f80
    v_cmp_eq_u32 vcc, 0, v6
    v_cmp_eq_u32 s[70:71], 20, v6
    s_mov_b32 s72, 0xffff0000
    s_mov_b32 s73, 0x07060302
    s_or_b64 vcc, vcc, s[70:71]
    s_mov_b32 s74, 0x%x
    v_cndmask_b32 v168, 0, v33, vcc
    v_mov_b32 v169, v168
    v_mov_b32 v170, v168
    v_mov_b32 v171, v168
    s_lshl_b32 s62, s46, 12
    s_add_u32 s62, s62, 16384
    v_lshlrev_b32 v44, 6, v6
    v_add_u32 v44, s62, v44
    s_lshl_b32 s69, s47, 4
    v_lshl_add_u32 v45, v5, 3, v44
    v_add_u32 v45, s69, v45
    s_lshl_b32 s62, s47, 9
    s_add_u32 s62, s62, 24576
    v_lshlrev_b32 v46, 2, v6
    v_add_u32 v46, s62, v46
    s_lshl_b32 s69, s46, 7
    v_add_u32 v47, s69, v46
    v_cmp_gt_u32 vcc, 32, v0
    s_lshl_b32 s75, s6, 2
    s_lshl_b32 s62, s46, 1
    s_add_u32 s75, s75, s62
    v_mov_b32 v190, 0
    v_mov_b32 v191, 0
    v_mov_b32 v194, 0
    v_mov_b32 v195, 0""" % fbits(1.0/448))
    def xr(P, tok): return (172 if P%4==0 else 128+16*(P%2))+4*tok
    def wr(P, hf): return 136+16*(P%2)+4*hf
    def reads(P):
        c,i=divmod(P,4); st=c%3; L=[]
        for hf in range(2):
            for z in range(2):
                L.append("ds_read_b64_tr_b16 v[%d:%d], v%d offset:%d" % (wr(P,hf)+2*z, wr(P,hf)+2*z+1, 28+i, st*8192+hf*4096+z*1024))
            L.append("ds_read_b128 %s, v%d offset:%d" % (r4(xr(P,hf)), 24+i, st*16384+hf*4096))
        return L
    so=[]
    for tok in range(2):
        for r in range(4):
            src=172+4*tok+r; t0=40+2*(r%2); t1=t0+1
            so+=["v_and_b32 v%d, s72, v%d" % (t0,src), "v_lshlrev_b32 v%d, 16, v%d" % (t1,src),
                "v_add_f32 v%d, v%d, v%d" % (36+2*tok,36+2*tok,t0), "v_fmac_f32 v%d, v%d, v%d" % (37+2*tok,t0,t0),
                "v_add_f32 v%d, v%d, v%d" % (36+2*tok,36+2*tok,t1), "v_fmac_f32 v%d, v%d, v%d" % (37+2*tok,t1,t1)]
    fm=[]
    for st in (8,4,2):
        for tok in range(2):
            b=196+16*tok
            for j in range(st): fm.append("v_add_f32 v%d, v%d, v%d" % (b+j,b+j,b+j+st))
    seq="""v_mul_f32 v{s}, s74, v{s}
        v_mul_f32 v{q}, s74, v{q}
        v_fma_f32 v{q}, -v{s}, v{s}, v{q}
        v_max_f32 v{q}, 0, v{q}
        v_cvt_pk_bf16_f32 v{f}, -v{s}, -v{s}
        v_cvt_pk_bf16_f32 v{q}, v{q}, v{q}
        v_and_b32 v{q}, s72, v{q}
        v_add_f32 v{q}, 0x{eps:x}, v{q}
        v_cvt_pk_bf16_f32 v{q}, v{q}, v{q}
        v_and_b32 v{q}, s72, v{q}
        v_sqrt_f32 v{q}, v{q}
        v_mov_b32 v{f1}, v{f}
        v_cvt_pk_bf16_f32 v{q}, v{q}, v{q}
        v_and_b32 v{d}, s72, v{q}
        v_rcp_f32 v{r}, v{d}
        v_mov_b32 v{f2}, v{f}
        v_mov_b32 v{f3}, v{f}"""
    s0,s1=[seq.format(s=196+16*tok,q=197+16*tok,f=180+4*tok,f1=181+4*tok,f2=182+4*tok,f3=183+4*tok,d=54+tok,r=56+tok,eps=fbits(1e-5)).split("\n") for tok in range(2)]
    for a_,b_ in zip(s0,s1): fm+=[a_,b_]
    for hf in range(2):
        fm+="""v_add_f32 v{c}, v{c}, v{c1}
        v_cndmask_b32 v{c}, 0, v{c}, vcc
        v_and_b32 v58, s72, v{c}
        v_sub_f32 v59, v{c}, v58
        v_and_b32 v60, s72, v59
        v_sub_f32 v61, v59, v60
        v_perm_b32 v{f}, v60, v58, s73
        v_lshrrev_b32 v{f1}, 16, v61""".format(c=50+2*hf,c1=51+2*hf,f=188+4*hf,f1=189+4*hf).split("\n")
    A("s_waitcnt vmcnt(8)\ns_barrier")
    stamp(A,2)
    for x in reads(0): A(x)
    pend=dma(2)
    for P in range(28):
        c,i=divmod(P,4)
        if P==12: stamp(A,3)
        rd=reads(P+1) if P<27 else []
        va=[]
        if i==3 and c<6:
            assert not pend
            A("s_waitcnt vmcnt(%d) lgkmcnt(0)\ns_barrier" % (6 if c+1<6 else 0))
            if c+3<=6: pend=dma(c+3)
        elif P==26:
            A("""s_mov_b32 exec_hi, 0
            ds_write_b32 v47, v160
            ds_write_b32 v47, v164 offset:256
            s_mov_b32 exec_hi, -1
            ds_write_b64 v45, v[36:37]
            ds_write_b64 v45, v[38:39] offset:2048
            s_waitcnt lgkmcnt(0)
            s_barrier""")
            ex=[]
            for tok in range(2):
                for q in range(4): ex.append("ds_read_b128 %s, v44 offset:%d" % (r4(196+16*tok+4*q), tok*2048+q*16))
            ex+=["ds_read2_b32 v[50:51], v46 offset0:0 offset1:32","ds_read2_b32 v[52:53], v46 offset0:64 offset1:96"]
            rd=ex+rd
        else:
            A("s_waitcnt lgkmcnt(0)")
        if c<6:
            if i<3: va=so[16*i:16*i+16]
        elif i<2: va=so[24*i:24*i+24]
        if P==5: rd=rd+["ds_read_b64_tr_b16 v[228:229], v48","ds_read_b64_tr_b16 v[230:231], v48 offset:512"]
        if P==27: va=fm
        take=2 if i!=2 else len(pend)
        dm=pend[:take]; pend=pend[take:]
        mm=[]
        for hf in range(2):
            if i<2:
                mm.append("v_mfma_f32_16x16x32_bf16 %s, v[168:171], %s, %s" % (r4(160+4*hf),r4(wr(P,hf)),r4(160+4*hf) if P else "0"))
            for tok in range(2):
                acc=64+32*hf+16*tok
                mm.append("%s %s, %s, %s, %s" % (MF,r16(acc),r4(wr(P,hf)),r4(xr(P,tok)),r16(acc) if P else "0"))
        if P==25: mm=[mm[0],mm[3],mm[1],mm[2],mm[4],mm[5]]
        X=os.environ.get("X","")
        if "v" in X and P<27: va=[]
        if "c" in X: mm=[m for m in mm if "16x16" not in m]
        if "d" in X: dm=[]
        if "t" in X: rd=[r for r in rd if "tr_b16" not in r]
        if "x" in X: rd=[r for r in rd if "b128" not in r]
        n=len(mm); slots=[[] for _ in range(n)]
        nr=RDS
        for j,x in enumerate(rd): slots[min(n-1,j*nr//len(rd))].append(x)
        for j,x in enumerate(dm): slots[n-2+(j*2)//len(dm)].append(x)
        for j,x in enumerate(va): slots[j*n//len(va)].append(x)
        for j in range(n):
            A(mm[j])
            for x in slots[j]: A(x)
    stamp(A,4)
    A("buffer_store_dwordx4 v[228:231], v49, s[40:43], s67 offen%s\ns_nop 0" % SC)
    for tok in range(2):
        for hf in range(2):
            acc=64+32*hf+16*tok
            A("%s %s, %s, %s, %s" % (MF,r16(acc),r4(188+4*hf),r4(180+4*tok),r16(acc)))
    A("s_cmp_ge_u32 s7, 14\ns_cbranch_scc1 k1_qkv")
    stamp(A,5)
    A("""v_mul_f32 v58, 0x%x, v56
    v_mul_f32 v59, 0x%x, v57
    s_mul_i32 s76, s75, %d
    s_lshl_b32 s62, s7, 2
    s_add_u32 s62, s62, s47
    s_lshl_b32 s62, s62, 11
    s_add_u32 s76, s76, s62
    s_add_u32 s76, s76, %d
    s_add_u32 s77, s76, %d
    s_nop 3""" % (fbits(-LOG2E), fbits(-LOG2E), 112*1024, HF_OFF, 112*1024))
    for tok in range(2):
        G=64+16*tok; U=96+16*tok
        for half in range(2):
            rs=range(8*half,8*half+8)
            for r in rs: A("v_mul_f32 v%d, v%d, v%d" % (G+r,G+r,58+tok))
            for r in rs: A("v_exp_f32 v%d, v%d" % (G+r,G+r))
            for r in rs: A("v_fma_f32 v%d, v%d, v%d, v%d" % (G+r,G+r,54+tok,54+tok))
            for r in rs: A("v_rcp_f32 v%d, v%d" % (G+r,G+r))
            for r in rs: A("v_mul_f32 v%d, v%d, v%d" % (U+r,U+r,G+r))
            o=128+8*tok+4*half
            for j in range(4): A("v_cvt_pk_bf16_f32 v%d, v%d, v%d" % (o+j,U+8*half+2*j,U+8*half+2*j+1))
            A("buffer_store_dwordx4 %s, v49, s[40:43], s%d offen offset:%d%s" % (r4(o),76+tok,half*1024,SC))
    stamp_out(A,7)
    A("s_endpgm")
    A.label("k1_qkv")
    stamp(A,5)
    qs=LOG2E*28**-0.5
    A("""s_sub_u32 s76, s7, 14
    s_lshl_b32 s76, s76, 3
    s_add_u32 s76, s76, s47
    s_mov_b32 s77, 0x%x
    s_cmp_ge_u32 s76, 10
    s_cselect_b32 s78, 1.0, s77
    s_cselect_b32 s71, -1, 0
    s_mov_b32 s70, 0
    s_cmp_eq_u32 s76, 10
    s_cselect_b32 s79, 0x3f803f80, 0
    s_cselect_b32 s80, 0x3f80, 0
    s_or_b32 s79, s79, 0x3f80
    v_mov_b32 v40, s79
    v_mov_b32 v41, s80
    v_mul_f32 v58, s77, v56
    v_mul_f32 v59, s77, v57
    v_mul_f32 v60, s78, v56
    v_mul_f32 v61, s78, v57
    s_mul_i32 s62, s46, 49152
    s_add_u32 s62, s62, %d
    v_and_b32 v42, 15, v0
    s_lshl_b32 s69, s47, 2
    v_xor_b32 v42, s69, v42
    v_lshlrev_b32 v42, 4, v42
    v_lshl_add_u32 v42, v5, 3, v42
    v_lshl_add_u32 v42, v6, 9, v42
    v_add_u32 v42, s62, v42""" % (fbits(qs), WB+8192))
    for q in range(1,4): A("v_xor_b32 v%d, %d, v42" % (32+q, 16*q))
    A("v_mov_b32 v32, v42")
    for hf in range(2):
        for tok in range(2):
            a0=64+32*hf+16*tok; o=128+16*hf+8*tok
            for j in range(16): A("v_mul_f32 v%d, v%d, v%d" % (a0+j,a0+j,58+2*hf+tok))
            for j in range(8): A("v_cvt_pk_bf16_f32 v%d, v%d, v%d" % (o+j,a0+2*j,a0+2*j+1))
            if hf: A("v_cndmask_b32 v%d, v%d, v40, s[70:71]\nv_cndmask_b32 v%d, v%d, v41, s[70:71]" % (o+6,o+6,o+7,o+7))
            for q in range(4): A("ds_write_b64 v%d, v[%d:%d] offset:%d" % (32+q,o+2*q,o+2*q+1,tok*24576+hf*256))
    A("""s_mul_i32 s62, s47, 24576
    s_lshl_b32 s69, s46, 13
    s_add_u32 s62, s62, s69
    s_add_u32 s62, s62, %d
    v_xor_b32 v43, v6, v5
    v_lshlrev_b32 v43, 4, v43
    v_lshl_add_u32 v43, v5, 9, v43
    v_add_u32 v43, s62, v43
    s_lshl_b32 s62, s6, 7
    s_add_u32 s62, s62, s49
    s_mul_i32 s62, s62, 896
    s_sub_u32 s69, s7, 14
    s_lshl_b32 s69, s69, 9
    s_add_u32 s81, s62, s69
    s_cmp_eq_u32 s7, 15
    s_cselect_b32 s69, 24, 32
    v_mul_u32_u24 v44, 896, v5
    v_lshl_add_u32 v44, v6, 4, v44
    v_cmp_gt_u32 vcc, s69, v6
    v_mov_b32 v45, 0x7fff0000
    s_waitcnt lgkmcnt(0)
    s_barrier
    v_cndmask_b32 v44, v45, v44, vcc""" % (WB+8192))
    for i in range(8):
        A("v_xor_b32 v45, %d, v43\nds_read_b128 %s, v45 offset:%d" % (32*i, r4(64+4*i), i*1024))
    for i in range(8):
        A("s_waitcnt lgkmcnt(%d)\nbuffer_store_dwordx4 %s, v44, s[40:43], s81 offen%s\ns_add_u32 s81, s81, 1792" % (7-i, r4(64+4*i), SC))
    A("s_cmp_eq_u32 s7, 14\ns_cbranch_scc1 k1_fin")
    A("""s_lshl_b32 s77, s6, 2
    s_add_u32 s77, s77, s45
    s_lshl_b32 s77, s77, 12
    s_add_u32 s77, s77, %d
    s_mul_i32 s62, s45, 24576
    s_add_u32 s62, s62, %d
    s_cmp_eq_u32 s44, 1
    s_cbranch_scc1 k1_v
    v_and_b32 v42, 15, v0
    v_xor_b32 v42, v42, v5
    v_xor_b32 v42, 24, v42
    v_lshlrev_b32 v42, 4, v42
    v_lshl_add_u32 v42, v6, 9, v42
    v_add_u32 v42, s62, v42
    v_xor_b32 v43, 32, v42
    ds_read_b128 v[96:99], v42
    ds_read_b128 v[100:103], v43
    s_waitcnt lgkmcnt(0)
    buffer_store_dwordx4 v[96:99], v49, s[40:43], s77 offen%s
    buffer_store_dwordx4 v[100:103], v49, s[40:43], s77 offen offset:1024%s
    s_branch k1_fin""" % (KV_OFF, WB+8192, SC, SC))
    A.label("k1_v")
    A("""v_lshl_add_u32 v42, v5, 2, v2
    v_and_b32 v43, 1, v1
    v_lshlrev_b32 v43, 1, v43
    v_bfe_u32 v45, v0, 1, 1
    v_add3_u32 v43, v43, v45, 28
    v_xor_b32 v43, v43, v42
    v_lshlrev_b32 v43, 4, v43
    v_lshl_add_u32 v43, v42, 9, v43
    v_and_b32 v45, 1, v0
    v_lshl_add_u32 v43, v45, 3, v43
    v_add_u32 v42, s62, v43
    v_xor_b32 v43, 128, v42
    ds_read_b64_tr_b16 v[96:97], v42
    ds_read_b64_tr_b16 v[98:99], v43 offset:4096
    ds_read_b64_tr_b16 v[100:101], v42 offset:8192
    ds_read_b64_tr_b16 v[102:103], v43 offset:12288
    s_waitcnt lgkmcnt(0)
    buffer_store_dwordx4 v[96:99], v49, s[40:43], s77 offen offset:2048%s
    buffer_store_dwordx4 v[100:103], v49, s[40:43], s77 offen offset:3072%s""" % (SC, SC))
    A.label("k1_fin")
    stamp_out(A,7)
    A.label("k1_done")
    A("s_endpgm")
    return kernel_desc(name, 232, 102)
```

```python
from asmlib import *
from k1 import *
K2_LDS=102656
K2_BLOCK=256
EX2=49152; FL=98304; MX=98560
def a4(i): return "a[%d:%d]" % (i,i+3)
def a16(i): return "a[%d:%d]" % (i,i+15)
OOB=0x7fff0000
class VM:
    def __init__(s): s.log=[]
    def issue(s, tag): s.log.append(tag)
    def need(s, tags):
        idx=max(i for i,t in enumerate(s.log) if t in tags and all(tt not in tags or True for tt in []) )
        return len(s.log)-1-idx
def gen_k2(A, name="k2_kernel"):
    kernel_head(A, name)
    A("s_cmp_ge_u32 s2, 256\ns_cbranch_scc1 k2_done")
    stamp(A,0); stamp_rt(A,7)
    A("""s_load_dwordx2 s[24:25], s[0:1], 88
    s_load_dwordx2 s[8:9], s[0:1], 0
    s_load_dwordx2 s[10:11], s[0:1], 72
    v_readfirstlane_b32 s3, v0
    v_and_b32 v0, 63, v0
    v_lshlrev_b32 v2, 4, v0
    v_lshrrev_b32 v5, 5, v0
    v_and_b32 v6, 31, v0
    s_lshr_b32 s3, s3, 6
    s_and_b32 s4, s2, 7
    s_lshl_b32 s4, s4, 2
    s_bfe_u32 s5, s2, 0x20003
    s_add_u32 s4, s4, s5
    s_lshr_b32 s5, s2, 5
    s_xor_b32 s6, s3, 3
    s_mov_b32 s72, 0xffff0000
    s_mov_b32 s73, 0x07060302
    s_mov_b32 s60, 0
    s_mul_i32 s12, s2, 7168
    v_mul_u32_u24 v3, 56, v6
    v_lshl_add_u32 v3, v5, 4, v3
    s_lshl_b32 s46, s3, 16
    s_add_u32 s46, s46, %d
    s_add_u32 s50, s46, 65536
    s_mov_b32 s47, %d""" % (KV_OFF, KV_OFF))
    for g in range(4): A("s_xor_b32 s%d, s6, %d\ns_mul_i32 s%d, s%d, 1792\ns_add_u32 s%d, s%d, s12" % (52+g,g,52+g,52+g,52+g,52+g))
    A("""s_and_b32 s13, s6, 1
    s_lshr_b32 s14, s6, 1
    s_lshl_b32 s15, s4, 1
    s_add_u32 s16, s15, s13
    s_xor_b32 s17, s16, 1
    s_mul_i32 s18, s3, %d
    s_add_u32 s18, s18, %d
    s_mul_i32 s64, s16, %d
    s_add_u32 s64, s64, s18
    s_mul_i32 s65, s17, %d
    s_add_u32 s65, s65, s18
    s_lshl_b32 s15, s5, 1
    s_add_u32 s19, s15, s14
    s_xor_b32 s20, s19, 1
    s_mul_i32 s18, s3, %d
    s_add_u32 s18, s18, %d
    s_mul_i32 s66, s19, %d
    s_add_u32 s66, s66, s18
    s_mul_i32 s67, s20, %d
    s_add_u32 s67, s67, s18
    s_cmp_lt_u32 s5, 7
    s_cselect_b32 s64, s64, 0x%x
    s_cselect_b32 s65, s65, 0x%x
    s_cselect_b32 s66, s66, 0x%x
    s_cselect_b32 s67, s67, 0x%x
    s_waitcnt lgkmcnt(0)""" % (28*1024, HF_OFF, 112*1024, 112*1024, 36*1024, WF_OFF, 144*1024, 144*1024, OOB,OOB,OOB,OOB))
    srd(A, 40, 24, WS_SIZE)
    Q=lambda g,s: 16+8*g+4*s
    O=lambda g: 48+16*g
    S=lambda b: 112+16*b
    P=lambda b: 144+8*b
    KV=lambda st,j: 160+16*st+4*j
    F=lambda st,j: 64+16*st+4*j
    T=lambda g: 192+16*g if False else [112,128,224,240][g]
    vm=VM()
    A("buffer_load_dwordx4 %s, v2, s[40:43], s47 offen\nbuffer_load_dwordx4 %s, v2, s[40:43], s47 offen offset:1024" % (r4(KV(3,0)), r4(KV(3,1))))
    for g in range(4):
        for s_ in range(2):
            A("buffer_load_dwordx4 %s, v3, s[40:43], s%d offen offset:%d" % (r4(Q(g,s_)), 52+g, s_*32))
    def kvload(st): return [("buffer_load_dwordx4 %s, v2, s[40:43], s48 offen offset:%d" % (r4(KV(st,j)), j*1024) + ("\ns_add_u32 s48, s48, 4096\ns_cmp_lt_u32 s48, s50\ns_cselect_b32 s48, s48, 0x%x" % OOB if j==3 else ""), ("kv",st,j)) for j in range(4)]
    def gload(st): return [("buffer_load_dwordx4 %s, v2, s[40:43], s%d offen\ns_add_u32 s%d, s%d, 1024" % (a4(F(st,j)), 68+j,68+j,68+j), ("g",st,j)) for j in range(4)]
    def em(L):
        for x,t in L: A(x); vm.issue(t)
    A.label("k2_restart")
    A("s_mov_b32 s48, s46\ns_mov_b32 s68, s64\ns_mov_b32 s69, s65\ns_mov_b32 s70, s66\ns_mov_b32 s71, s67")
    em(kvload(0)); em(gload(0)); em(gload(1)); em(kvload(1))
    srd(A, 28, 8, 2048*896)
    srd(A, 32, 10, 2048*896)
    for r in range(64): A("v_accvgpr_write_b32 a%d, 0" % r)
    for r in range(48,112): A("v_mov_b32 v%d, 0" % r)
    for r in list(range(P(1),P(1)+8))+list(range(KV(3,2),KV(3,2)+8)): A("v_mov_b32 v%d, 0" % r)
    def zero_mslots():
        A("s_mov_b32 exec_lo, 0")
        for g in range(4): A("v_mov_b32 v%d, 0\nv_mov_b32 v%d, 0" % (Q(g,1)+2, Q(g,1)+3))
        A("s_mov_b32 exec_lo, -1")
    M_=lambda g: 8+g
    def patch_all(off):
        t=lambda g,k: P(0)+2*g+k
        for g in range(4): A("v_sub_f32 v%d, %s, v%d" % (M_(g), off, M_(g)))
        for g in range(4): A("v_and_b32 v%d, s72, v%d" % (t(g,0), M_(g)))
        for g in range(4): A("v_sub_f32 v%d, v%d, v%d" % (M_(g), M_(g), t(g,0)))
        for g in range(4): A("v_and_b32 v%d, s72, v%d" % (t(g,1), M_(g)))
        for g in range(4): A("v_sub_f32 v%d, v%d, v%d" % (M_(g), M_(g), t(g,1)))
        A("s_mov_b32 exec_lo, 0")
        for g in range(4): A("v_perm_b32 v%d, v%d, v%d, s73\nv_lshrrev_b32 v%d, 16, v%d" % (Q(g,1)+2, t(g,1), t(g,0), Q(g,1)+3, M_(g)))
        A("s_mov_b32 exec_lo, -1")
    def max16(dst, b, first):
        if first: A("v_max_f32 v%d, v%d, v%d" % (dst, b, b+1))
        else: A("v_max3_f32 v%d, v%d, v%d, v%d" % (dst, dst, b, b+1))
        for j in range(2,16,2): A("v_max3_f32 v%d, v%d, v%d, v%d" % (dst, dst, b+j, b+j+1))
    def xhalf_all():
        for g in range(4): A("v_mov_b32 v%d, v%d" % (12+g, M_(g)))
        A("s_nop 0")
        for g in range(4): A("v_permlane32_swap_b32 v%d, v%d" % (M_(g), 12+g))
        for g in range(4): A("v_max_f32 v%d, v%d, v%d" % (M_(g), M_(g), 12+g))
    def qk_all():
        for g in range(4):
            A("%s %s, %s, %s, 0" % (MF, r16(T(g)), r4(KV(3,0)), r4(Q(g,0))))
            A("%s %s, %s, %s, %s" % (MF, r16(T(g)), r4(KV(3,1)), r4(Q(g,1)), r16(T(g))))
    A("s_cmp_lg_u32 s60, 0\ns_cbranch_scc1 k2_skipm0")
    stamp(A,1)
    A("s_waitcnt vmcnt(16)")
    stamp(A,2)
    zero_mslots()
    A("s_nop 0")
    qk_all()
    A("s_nop 5")
    for g in range(4): max16(M_(g), T(g), True)
    xhalf_all(); patch_all("0xc2800000")
    A.label("k2_skipm0")
    A("s_waitcnt vmcnt(12)\ns_mov_b32 s49, 0")
    A("%s %s, %s, %s, 0" % (MF, r16(S(0)), r4(KV(0,0)), r4(Q(0,0))))
    A("%s %s, %s, %s, %s" % (MF, r16(S(0)), r4(KV(0,1)), r4(Q(0,1)), r16(S(0))))
    em(gload(2)); em(gload(3)); em(kvload(2)); em(gload(4)); em(gload(5)); em(gload(6))
    def body():
        items=[]; gi=0; pend=[]
        for u in range(16):
            t,g=divmod(u,4); tn,gn=divmod((u+1)%16,4); tp_,gp=divmod((u-1)%16,4)
            b=u%2; s0=S(b); s1=S(1-b)
            M=[("%s %s, %s, %s, 0" % (MF, r16(s1), r4(KV(tn,0)), r4(Q(gn,0))), [("kv",tn,0)]),
               ("%s %s, %s, %s, %s" % (MF, r16(s1), r4(KV(tn,1)), r4(Q(gn,1)), r16(s1)), [("kv",tn,1)]),
               ("%s %s, %s, %s, %s" % (MF, r16(O(gp)), r4(KV(tp_,2)), r4(P(1-b)), r16(O(gp))), [("kv",tp_,2)]),
               ("%s %s, %s, %s, %s" % (MF, r16(O(gp)), r4(KV(tp_,3)), r4(P(1-b)+4), r16(O(gp))), [("kv",tp_,3)])]
            def G():
                nonlocal gi
                j,tau=divmod(gi,4); ct,tok=divmod(tau,2); gi+=1
                return ("%s %s, %s, %s, %s" % (MF, a16(16*tau), a4(F(j,2+ct)), a4(F(j,tok)), a16(16*tau)), [("g",j,2+ct),("g",j,tok)], j if tau==3 else None)
            e=lambda j: "v_exp_f32 v%d, v%d" % (s0+j,s0+j)
            c=lambda j: "v_cvt_pk_bf16_f32 v%d, v%d, v%d" % (P(b)+j,s0+2*j,s0+2*j+1)
            if g!=3:
                order=[M[0],"G",M[1],M[2],"G",M[3]]
                gaps=[[e(0),e(1),e(2),c(0)],[e(3),e(4),e(5),c(1)],[e(6),e(7),e(8),c(2)],[e(9),e(10),e(11),c(3)],[e(12),e(13),c(4),c(5)],[e(14),e(15),c(6),c(7)]]
            else:
                order=[M[0],M[1],"G",M[2],M[3]]
                gaps=[[e(0),e(1),e(2),e(3)],[e(4),e(5),e(6),c(0),c(1)],[e(7),e(8),e(9),c(2),c(3)],[e(10),e(11),e(12),c(4),c(5)],[e(13),e(14),e(15),c(6),c(7)]]
            if g==1: pend=kvload((t+3)%4)+pend
            for m,gp_ in zip(order,gaps):
                if m=="G":
                    m=G()
                    items.append(("m",m[0],m[1]))
                    if m[2] is not None: pend=pend+gload(m[2])
                else: items.append(("m",m[0],m[1]))
                if pend: x=pend.pop(0); items.append(("l",x[0],x[1]))
                for x in gp_: items.append(("v",x,None))
        for x in pend: items.append(("l",x[0],x[1]))
        return items
    items=body()
    waits={}
    for it in range(3):
        for n,(k,x,t) in enumerate(items):
            if k=="l": vm.issue(t)
            elif k=="m":
                tt=[z for z in t if z in vm.log]
                if tt: waits[n]=min(waits.get(n,63), min(len(vm.log)-1-max(i for i,y in enumerate(vm.log) if y==z) for z in tt))
    stamp(A,3)
    A.raw(".p2align 6"); A.label("k2_loop")
    cur=63
    for n,(k,x,t) in enumerate(items):
        if k=="m" and n in waits and waits[n]<cur:
            A("s_waitcnt vmcnt(%d)" % waits[n]); cur=waits[n]
        if k=="l": cur+=1
        A(x)
    A("""s_add_u32 s49, s49, 1
    s_cmp_eq_u32 s49, 3
    s_cselect_b32 s68, 0x%x, s68
    s_cselect_b32 s69, 0x%x, s69
    s_cmp_lt_u32 s49, 4
    s_cbranch_scc1 k2_loop""" % (OOB,OOB))
    stamp(A,4)
    A("%s %s, %s, %s, %s" % (MF, r16(O(3)), r4(KV(3,2)), r4(P(1)), r16(O(3))))
    A("%s %s, %s, %s, %s" % (MF, r16(O(3)), r4(KV(3,3)), r4(P(1)+4), r16(O(3))))
    A("""buffer_load_dwordx4 a[176:179], v2, s[40:43], s70 offen
    buffer_load_dwordx4 a[180:183], v2, s[40:43], s71 offen
    s_mul_i32 s61, s17, %d
    s_lshl_b32 s62, s20, 6
    s_add_u32 s74, s61, s62
    v_mul_u32_u24 v7, 896, v6
    v_lshl_add_u32 v7, v5, 4, v7
    buffer_load_dwordx4 v[224:227], v7, s[28:31], s74 offen
    buffer_load_dwordx4 v[228:231], v7, s[28:31], s74 offen offset:32""" % (32*896))
    for tau in range(3): A("s_xor_b32 s61, s6, %d\ns_mul_i32 s61, s61, 12288\ns_add_u32 s61, s61, %d\nv_add_u32 v%d, s61, v2" % (tau, tau*4096, 12+tau))
    A("s_mul_i32 s61, s3, 12288\nv_add_u32 v15, s61, v2\ns_mov_b32 s62, 0x5e800000")
    for g in range(3):
        for q in range(4): A("ds_write_b128 v%d, %s offset:%d" % (12+g, r4(O(g)+4*q), q*1024))
    A("""v_add_f32 v8, v%d, v%d
    v_add_f32 v9, v%d, v%d
    v_add_f32 v8, v8, v9
    v_cmp_nge_f32 vcc, s62, v8
    s_lshl_b32 s61, s3, 2
    s_add_u32 s61, s61, %d
    v_mov_b32 v9, s61
    v_mov_b32 v10, %d
    v_mov_b32 v8, vcc_hi
    ds_write_b32 v9, v8
    s_waitcnt lgkmcnt(0)
    s_barrier
    ds_read_b128 v[232:235], v10""" % (O(0)+12,O(1)+12,O(2)+12,O(3)+12,FL,FL))
    for g in range(3):
        for q in range(4): A("ds_read_b128 %s, v15 offset:%d" % (r4(O(g)+4*q), g*4096+q*1024))
    A("""s_and_b32 s61, s2, 3
    s_lshl_b32 s61, s61, 3
    s_lshl_b32 s62, s3, 1
    s_add_u32 s61, s61, s62
    v_lshrrev_b32 v8, 4, v6
    v_add_u32 v8, s61, v8
    v_lshl_add_u32 v8, v5, 5, v8
    v_lshlrev_b32 v8, 4, v8
    v_and_b32 v9, 15, v0
    v_lshl_add_u32 v8, v9, 11, v8
    s_lshr_b32 s75, s2, 2
    s_lshl_b32 s75, s75, 15
    s_add_u32 s75, s75, %d
    s_waitcnt lgkmcnt(12)
    v_or_b32 v232, v232, v233
    v_or3_b32 v232, v232, v234, v235
    s_nop 0
    v_readfirstlane_b32 s63, v232
    s_nop 0
    s_cmp_lg_u32 s63, 0
    s_cselect_b32 s63, 1, 0
    s_cmp_gt_u32 s63, s60
    s_cbranch_scc1 k2_fb""" % OF_OFF)
    o3=O(3)
    for g in range(3):
        A("s_waitcnt lgkmcnt(%d)" % (8-4*g))
        for j in ([12]+[j for j in range(16) if j!=12]): A("v_add_f32 v%d, v%d, v%d" % (o3+j,o3+j,O(g)+j))
    A("v_mov_b32 v9, v%d\nv_mov_b32 v10, v%d\ns_nop 1\nv_permlane32_swap_b32 v9, v10\ns_nop 0\nv_rcp_f32 v10, v10\ns_mov_b32 s61, -2" % (o3+12,o3+12))
    for j in range(16): A("v_mul_f32 v%d, v%d, v10" % (o3+j,o3+j))
    for j in range(8): A("v_cvt_pk_bf16_f32 v%d, v%d, v%d" % (48+j,o3+2*j,o3+2*j+1))
    for j in (0,3,4,7): A("v_min_u32 v%d, s61, v%d" % (48+j,48+j))
    A("buffer_store_dwordx4 v[48:51], v8, s[40:43], s75 offen sc1\nbuffer_store_dwordx4 v[52:55], v8, s[40:43], s75 offen offset:1024 sc1")
    A("s_cmp_ge_u32 s5, 7\ns_cbranch_scc1 k2_fin")
    stamp(A,5)
    A("""s_lshl_b32 s61, s3, 13
    s_add_u32 s61, s61, %d
    s_lshl_b32 s76, s16, 15
    s_add_u32 s76, s76, s61
    s_lshl_b32 s77, s17, 15
    s_add_u32 s77, s77, s61
    s_add_u32 s78, s76, 4096
    s_add_u32 s79, s77, 4096
    s_mov_b32 s80, 0""" % OF_OFF)
    A.label("k2_poll")
    OFR=lambda k,tok: 112+8*k+4*tok
    for k in range(8):
        for tok in range(2): A("buffer_load_dwordx4 %s, v2, s[40:43], s%d offen offset:%d sc1" % (r4(OFR(k,tok)), 76+tok+2*(k//4), (k%4)*1024))
    A("v_mov_b32 v9, 0")
    for k in range(8):
        A("s_waitcnt vmcnt(%d)" % (14-2*k))
        for tau in range(4):
            ct,tok=divmod(tau,2)
            wf=F(k,2+ct) if k<7 else 176+4*ct
            A("%s %s, %s, %s, %s" % (MF, a16(192+16*tau), a4(wf), r4(OFR(k,tok)), a16(192+16*tau) if k else a16(16*tau)))
            if tau<2: A("v_max3_u32 v9, v9, v%d, v%d" % (OFR(k,tau), OFR(k,tau)+3))
    A("""v_cmp_eq_u32 vcc, -1, v9
    s_add_u32 s80, s80, 1
    s_cmp_gt_u32 s80, 0x40000
    s_cbranch_scc1 k2_go
    s_nop 1
    s_cbranch_vccnz k2_poll""")
    A.label("k2_go")
    A("s_nop 7")
    for tau in range(3):
        for q in range(4): A("ds_write_b128 v%d, %s offset:%d" % (12+tau, a4(192+16*tau+4*q), EX2+q*1024))
    for j in range(16): A("v_accvgpr_read_b32 v%d, a%d" % (o3+j, 240+j))
    for j in range(8): A("v_lshlrev_b32 v%d, 16, v%d\nv_and_b32 v%d, s72, v%d" % (176+2*j,224+j,177+2*j,224+j))
    A("s_waitcnt lgkmcnt(0)\ns_barrier")
    for g in range(3):
        for q in range(4): A("ds_read_b128 %s, v15 offset:%d" % (r4(O(g)+4*q), EX2+g*4096+q*1024))
    for g in range(3):
        A("s_waitcnt lgkmcnt(%d)" % (8-4*g))
        for j in range(16): A("v_add_f32 v%d, v%d, v%d" % (o3+j,o3+j,O(g)+j))
    A("s_nop 0")
    for sp in range(2):
        for i in range(4): A("v_permlane32_swap_b32 v%d, v%d" % (o3+8*sp+i, o3+8*sp+4+i))
    for j in range(16): A("v_add_f32 v%d, v%d, v%d" % (o3+j,o3+j,176+j))
    for j in range(8): A("v_cvt_pk_bf16_f32 v%d, v%d, v%d" % (48+j,o3+2*j,o3+2*j+1))
    A("buffer_store_dwordx4 v[48:51], v7, s[32:35], s74 offen\nbuffer_store_dwordx4 v[52:55], v7, s[32:35], s74 offen offset:32")
    A.label("k2_fin")
    stamp_out(A,7,kidx=1)
    A.label("k2_done")
    A("s_endpgm")
    A.label("k2_fb")
    A("s_mov_b32 s60, 1\ns_waitcnt vmcnt(0) lgkmcnt(0)")
    zero_mslots()
    A("s_mov_b32 s48, s46\ns_mov_b32 s49, 0")
    for g in range(4): A("v_mov_b32 v%d, 0xff800000" % M_(g))
    A.label("k2_fb_loop")
    A("buffer_load_dwordx4 %s, v2, s[40:43], s48 offen\nbuffer_load_dwordx4 %s, v2, s[40:43], s48 offen offset:1024\ns_add_u32 s48, s48, 4096\ns_waitcnt vmcnt(0)" % (r4(KV(3,0)), r4(KV(3,1))))
    qk_all()
    A("s_nop 5")
    for g in range(4): max16(M_(g), T(g), False)
    A("s_add_u32 s49, s49, 1\ns_cmp_lt_u32 s49, 16\ns_cbranch_scc1 k2_fb_loop")
    xhalf_all()
    A("v_lshlrev_b32 v4, 2, v0\ns_lshl_b32 s62, s3, 10")
    for g in range(4):
        A("s_xor_b32 s61, s6, %d\ns_lshl_b32 s61, s61, 8\ns_add_u32 s61, s61, %d\nv_add_u32 v%d, s61, v4\nv_add_u32 v1, s62, v%d\nds_write_b32 v1, v%d" % (g, MX, 12+g, 12+g, M_(g)))
    A("s_waitcnt lgkmcnt(0)\ns_barrier")
    for g in range(4):
        for w in range(4): A("ds_read_b32 v%d, v%d offset:%d" % (112+4*g+w, 12+g, w*1024))
        A("s_waitcnt lgkmcnt(0)")
        A("v_max3_f32 v%d, v%d, v%d, v%d\nv_max_f32 v%d, v%d, v%d" % (M_(g),112+4*g,113+4*g,114+4*g,M_(g),M_(g),115+4*g))
    patch_all("0")
    A("s_branch k2_restart")
    return kernel_desc(name, 512, 102, 256)
```

```python
from asmlib import *
from k1 import *
from k2 import MF, r4, r16
K3_GRID=224; K3_BLOCK=256; K3_LDS=4*64*272
def gen_k3(A, name="k3_kernel"):
    kernel_head(A, name)
    A("s_cmp_ge_u32 s2, 224\ns_cbranch_scc1 k3_done")
    stamp(A,0); stamp_rt(A,7)
    A("""s_load_dwordx2 s[8:9], s[0:1], 72
    s_load_dwordx2 s[24:25], s[0:1], 88
    v_readfirstlane_b32 s3, v0
    v_mov_b32 v1, v0
    v_and_b32 v0, 63, v0
    v_lshlrev_b32 v2, 4, v0
    v_lshrrev_b32 v5, 5, v0
    v_and_b32 v6, 31, v0
    s_lshr_b32 s3, s3, 6
    s_and_b32 s4, s2, 7
    s_lshl_b32 s4, s4, 2
    s_bfe_u32 s5, s2, 0x20003
    s_add_u32 s4, s4, s5
    s_lshr_b32 s5, s2, 5
    s_mul_i32 s61, s3, %d
    s_mul_i32 s44, s4, %d
    s_add_u32 s44, s44, s61
    s_add_u32 s44, s44, %d
    s_add_u32 s45, s44, %d
    s_mul_i32 s46, s5, %d
    s_add_u32 s46, s46, s61
    s_add_u32 s46, s46, %d
    s_add_u32 s47, s46, %d
    s_waitcnt lgkmcnt(0)""" % (7*1024, 2*28*1024, OF_OFF, 28*1024, 2*140*1024, WF_OFF, 140*1024))
    srd(A, 28, 8, 2048*896)
    srd(A, 40, 24, WS_SIZE)
    F=lambda st,j: 112+16*st+4*j
    for k in range(7):
        for j in range(4): A("buffer_load_dwordx4 %s, v2, s[40:43], s%d offen offset:%d" % (r4(F(k,j)), 44+j, (k%4)*1024))
        if k==3:
            for j in range(4): A("s_add_u32 s%d, s%d, 4096" % (44+j,44+j))
    A("""v_lshrrev_b32 v7, 3, v1
    s_lshl_b32 s61, s4, 6
    v_add_u32 v8, s61, v7
    v_and_b32 v11, 7, v1
    s_lshl_b32 s61, s5, 3
    v_add_u32 v12, s61, v11
    v_mul_u32_u24 v9, 896, v8
    v_lshl_add_u32 v9, v12, 4, v9
    v_lshlrev_b32 v13, 1, v9
    s_mov_b32 s64, %d
    s_mov_b32 s65, %d
    s_mov_b32 s66, %d""" % (XB_OFF, XB_OFF+32*1792, 32*896))
    for p in range(2):
        for z in range(2): A("buffer_load_dwordx4 %s, v13, s[40:43], s%d offen offset:%d" % (r4(16+8*p+4*z), 64+p, z*16))
    for k in range(7):
        if k<2: stamp(A,1+k)
        A("s_waitcnt vmcnt(%d)" % (4*(6-k)+4))
        for ct in range(2):
            for tok in range(2):
                acc=48+32*ct+16*tok
                A("%s %s, %s, %s, %s" % (MF, r16(acc), r4(F(k,2+ct)), r4(F(k,tok)), r16(acc) if k else "0"))
    A("""s_mul_i32 s61, s3, %d
    v_mul_u32_u24 v10, 272, v6
    v_lshl_add_u32 v10, v5, 4, v10
    v_add_u32 v10, s61, v10
    v_mul_u32_u24 v14, 272, v7
    v_lshl_add_u32 v14, v11, 5, v14
    s_nop 7""" % (64*272))
    for ct in range(2):
        for tok in range(2):
            for q in range(4): A("ds_write_b128 v10, %s offset:%d" % (r4(48+32*ct+16*tok+4*q), tok*32*272+ct*128+q*32))
    stamp(A,3)
    A("s_waitcnt lgkmcnt(0)\ns_barrier")
    stamp(A,4)
    for p in range(2):
        for w in range(4):
            for z in range(2): A("ds_read_b128 %s, v14 offset:%d" % (r4(112+32*p+8*w+4*z), w*64*272+p*32*272+z*16))
    A("s_waitcnt vmcnt(0)")
    stamp(A,5)
    for p in range(2):
        b=112+32*p
        A("s_waitcnt lgkmcnt(%d)" % (8-8*p))
        for j in range(8): A("v_add_f32 v%d, v%d, v%d\nv_add_f32 v%d, v%d, v%d" % (b+j,b+j,b+8+j,b+16+j,b+16+j,b+24+j))
        for j in range(8): A("v_add_f32 v%d, v%d, v%d" % (b+j,b+j,16+8*p+j))
        for j in range(8): A("v_add_f32 v%d, v%d, v%d" % (b+j,b+j,b+16+j))
        for j in range(4): A("v_cvt_pk_bf16_f32 v%d, v%d, v%d" % (b+8+j,b+2*j,b+2*j+1))
        A("buffer_store_dwordx4 %s, v9, s[28:31], %s offen" % (r4(b+8), "s66" if p else "0"))
    stamp_out(A,7,kidx=2)
    A.label("k3_done")
    A("s_endpgm")
    return kernel_desc(name, 224, 102)
```

```python
class Asm:
    def __init__(self): self.l = []; self.uid = 0
    def __call__(self, s):
        for x in s.strip("\n").split("\n"): self.l.append("    " + x.strip())
    def label(self, n): self.l.append(n + ":")
    def raw(self, s): self.l.append(s)
    def newlabel(self, p="L"):
        self.uid += 1; return "%s_%d" % (p, self.uid)
    def text(self): return "\n".join(self.l) + "\n"
def v(i, n=1): return "v%d" % i if n == 1 else "v[%d:%d]" % (i, i + n - 1)
def a(i, n=1): return "a%d" % i if n == 1 else "a[%d:%d]" % (i, i + n - 1)
def s(i, n=1): return "s%d" % i if n == 1 else "s[%d:%d]" % (i, i + n - 1)
def kernel_head(A, name):
    A.raw(".text"); A.raw(".globl %s" % name); A.raw(".p2align 8"); A.raw(".type %s,@function" % name); A.label(name)
def kernel_desc(name, vgpr, sgpr=102, accum=None):
    if accum is None: accum = (vgpr + 3) // 4 * 4
    return """.section .rodata,"a"
.p2align 6
.amdhsa_kernel %s
  .amdhsa_next_free_vgpr %d
  .amdhsa_next_free_sgpr %d
  .amdhsa_accum_offset %d
  .amdhsa_group_segment_fixed_size 0
  .amdhsa_kernarg_size 96
  .amdhsa_user_sgpr_count 2
  .amdhsa_user_sgpr_kernarg_segment_ptr 1
  .amdhsa_system_sgpr_workgroup_id_x 1
  .amdhsa_float_denorm_mode_32 3
.end_amdhsa_kernel
""" % (name, vgpr, sgpr, min(accum, 256))
def srd(A, d, b, nbytes):
    A("s_mov_b32 s%d, s%d\ns_and_b32 s%d, s%d, 0xffff\ns_mov_b32 s%d, 0x%x\ns_mov_b32 s%d, 0x00020000" % (d, b, d + 1, b + 1, d + 2, nbytes, d + 3))
import os
STAMP = int(os.environ.get("STAMP", "0"))
MT = "s_memrealtime" if os.environ.get("RT") else "s_memtime"
def stamp(A, n):
    if STAMP: A("%s s[%d:%d]" % (MT, 84 + 2 * n, 85 + 2 * n))
def stamp_rt(A, n):
    if STAMP: A("s_memrealtime s[%d:%d]" % (84 + 2 * n, 85 + 2 * n))
def stamp_out(A, n, wave_sgpr=3, kidx=0):
    if not STAMP: return
    L = A.newlabel("st")
    A("s_waitcnt vmcnt(0)\n"+MT+" s[96:97]\ns_memrealtime s[100:101]\ns_load_dwordx2 s[82:83], s[0:1], 80\ns_waitcnt lgkmcnt(0)")
    A("s_lshl_b32 s81, s2, 3\ns_add_u32 s81, s81, s%d\ns_lshl_b32 s81, s81, 3\ns_add_u32 s81, s81, %d\nv_mov_b32 v1, s81\nv_mov_b32 v2, s98\nv_mov_b32 v3, s100\nglobal_store_dwordx2 v1, v[2:3], s[24:25]" % (wave_sgpr, 0x1200000 + kidx * 16384))
    A("s_cmp_lg_u32 s2, %d\ns_cbranch_scc1 %s" % (STAMP - 1, L))
    A("s_lshl_b32 s81, s%d, 5\nv_mov_b32 v1, s81" % wave_sgpr)
    for i in range(1, 7):
        A("s_sub_u32 s81, s%d, s84\nv_mov_b32 v2, s81\nglobal_store_dword v1, v2, s[82:83] offset:%d" % (84 + 2 * i, 4 * (i - 1)))
    A("v_mov_b32 v2, s80\nglobal_store_dword v1, v2, s[82:83] offset:24")
    A("s_sub_u32 s81, s100, s98\nv_mov_b32 v2, s81\nglobal_store_dword v1, v2, s[82:83] offset:28")
    A.label(L)
```

```python
from asmlib import *
QS_OFF=0; KV_OFF=0x200000; WF_OFF=0x240000; OF_OFF=0x440000; WO_OFF=0x640000; HF_OFF=0xA00000; WS_SIZE=0x1100000
LOG2E=1.4426950408889634
import struct, os
def fbits(x): return struct.unpack("<I", struct.pack("<f", x))[0]
K1_LDS=155648
RDS=int(os.environ.get("RDS","1"))
SC=os.environ.get("SC"," sc1")
MF="v_mfma_f32_32x32x16_bf16"
def r4(i): return "v[%d:%d]" % (i,i+3)
def r16(i): return "v[%d:%d]" % (i,i+15)
def interleave(main, fill):
    out=[]; n=len(main); k=0
    for i,m in enumerate(main):
        out.append(m)
        tgt=(len(fill)*(i+1)+n-1)//n
        while k<tgt: out.append(fill[k]); k+=1
    return out
def merge(a, b):
    out=[]; i=j=0
    while i<len(a) or j<len(b):
        if j>=len(b) or (i<len(a) and i*len(b)<=j*len(a)): out.append(a[i]); i+=1
        else: out.append(b[j]); j+=1
    return out
def gen_k1(A, name="k1_kernel", sentinel=False):
    WB=49152; TS=147456
    kernel_head(A, name)
    A("s_cmp_ge_u32 s2, 256\ns_cbranch_scc1 k1_done")
    stamp(A,0); stamp_rt(A,7)
    A("""s_load_dwordx8 s[8:15], s[0:1], 0
    s_load_dwordx4 s[20:23], s[0:1], 48
    s_load_dwordx2 s[16:17], s[0:1], 32
    s_load_dwordx2 s[18:19], s[0:1], 64
    s_load_dwordx2 s[24:25], s[0:1], 88
    v_readfirstlane_b32 s3, v0
    v_and_b32 v0, 63, v0
    s_and_b32 s4, s2, 7
    s_lshr_b32 s5, s2, 3
    s_lshr_b32 s3, s3, 6
    s_and_b32 s6, s4, 1
    s_lshl_b32 s6, s6, 3
    s_and_b32 s7, s5, 7
    s_add_u32 s6, s6, s7
%s
    s_lshr_b32 s44, s3, 2
    s_and_b32 s45, s3, 3
    s_and_b32 s46, s3, 1
    s_lshr_b32 s47, s3, 1
    s_lshl_b32 s48, s46, 1
    s_xor_b32 s48, s47, s48
    v_lshrrev_b32 v1, 4, v0
    v_bfe_u32 v2, v0, 2, 2
    v_and_b32 v3, 3, v0
    v_xor_b32 v4, v2, v1
    v_lshrrev_b32 v5, 5, v0
    v_and_b32 v6, 31, v0
    s_lshl_b32 s49, s3, 4
    v_lshrrev_b32 v7, 3, v0
    v_add_u32 v7, s49, v7
    v_mul_u32_u24 v8, 896, v7
    v_and_b32 v10, 7, v0
    v_xor_b32 v11, v10, v1
    v_lshl_add_u32 v8, v11, 4, v8
    v_xor_b32 v9, 64, v8
    v_add_u32 v9, 7168, v9""" % ("""s_lshr_b32 s7, s4, 1
    s_lshl_b32 s7, s7, 2
    s_lshr_b32 s5, s5, 3
    s_add_u32 s7, s7, s5""" if os.environ.get("SP","1")=="0" else """s_lshr_b32 s44, s4, 2
    s_bfe_u32 s45, s4, 0x10001
    s_mul_i32 s46, s44, 7
    s_lshl_b32 s47, s45, 2
    s_add_u32 s47, s47, s46
    s_add_u32 s46, s46, 3
    s_add_u32 s44, s44, 14
    s_lshr_b32 s7, s7, 2
    s_cmp_eq_u32 s7, s45
    s_cselect_b32 s46, s46, s44
    s_lshr_b32 s5, s5, 3
    s_add_u32 s47, s47, s5
    s_sub_u32 s47, s47, 1
    s_cmp_eq_u32 s5, 0
    s_cselect_b32 s7, s46, s47"""))
    A("""s_lshl_b32 s50, s7, 8
    s_sub_u32 s51, s7, 14
    s_lshl_b32 s51, s51, 9
    s_lshl_b32 s52, s44, 8
    s_add_u32 s51, s51, s52
    s_cmp_lt_u32 s7, 14
    s_movk_i32 s53, 896
    s_cselect_b32 s53, 3584, s53
    s_cselect_b32 s50, s50, s51
    s_lshl_b32 s57, s7, 1
    s_add_u32 s57, s57, s44
    s_cmp_eq_u32 s57, 31
    s_cselect_b32 s57, 2, 100
    v_mov_b32 v13, s53
    v_lshlrev_b32 v20, 6, v4
    v_add_u32 v20, s50, v20
    v_cmp_le_u32 vcc, s57, v4
    v_mov_b32 v17, 0
    v_mov_b32 v19, 0
    v_mov_b32 v21, 56
    v_cndmask_b32 v13, v13, v21, vcc
    v_cndmask_b32 v20, v20, v17, vcc
    s_lshl_b32 s58, s45, 4
    v_add_u32 v21, s58, v1
    v_mul_lo_u32 v21, v21, v13
    v_add_u32 v20, v20, v21
    v_lshl_add_u32 v16, v3, 4, v20
    v_cmp_eq_u32 s[70:71], s57, v4
    s_mul_i32 s59, s6, %d
    s_lshl_b32 s60, s3, 11
    s_mul_i32 s61, s45, 24576
    s_lshl_b32 s62, s44, 12
    s_add_u32 s61, s61, s62
    s_add_u32 s61, s61, %d
    s_waitcnt lgkmcnt(0)
    s_cmp_eq_u32 s44, 0
    s_cselect_b32 s32, s20, s22
    s_cselect_b32 s33, s21, s23
    s_cmp_lt_u32 s7, 14
    s_cselect_b32 s32, s32, s10
    s_cselect_b32 s33, s33, s11
    v_mov_b32 v14, s32
    v_mov_b32 v15, s33
    v_mov_b32 v21, s14
    v_mov_b32 v22, s15
    v_cndmask_b32 v14, v14, v21, vcc
    v_cndmask_b32 v15, v15, v22, vcc
    v_mov_b32 v21, s12
    v_mov_b32 v22, s13
    v_cndmask_b32 v14, v14, v21, s[70:71]
    v_cndmask_b32 v15, v15, v22, s[70:71]
    v_lshl_add_u64 v[14:15], v[16:17], 0, v[14:15]
    v_lshlrev_b32 v16, 2, v13
    v_mul_u32_u24 v18, 52, v13""" % (128*896, WB))
    srd(A, 28, 8, 2048*896)
    def dma(c):
        st=c%3; L=[]
        for p in range(4):
            L.append("s_add_u32 m0, s61, %d\ns_nop 0\nglobal_load_lds_dwordx4 v[14:15], off\nv_lshl_add_u64 v[14:15], v[%d:%d], 0, v[14:15]" % (st*8192+p*1024, 18 if p==3 else 16, 19 if p==3 else 17))
            if p%2==0:
                e=p//2
                L.append("s_add_u32 m0, s60, %d\ns_nop 0\nbuffer_load_dwordx4 v%d, s[28:31], s59 offen lds%s" % (st*16384+e*1024, 8+e, "\ns_add_u32 s59, s59, 128" if e else ""))
        return L
    for c in range(2):
        for x in dma(c): A(x)
    PF=int(os.environ.get("PF","0"))
    pfa="""s_and_b32 s62, s6, 7
        s_mul_i32 s62, s62, 40
        s_mul_i32 s63, s45, 10
        s_add_u32 s62, s62, s63
        s_add_u32 s62, s62, 128
        v_lshrrev_b32 v34, 1, v0
        v_add_u32 v34, s62, v34
        v_mul_lo_u32 v34, v34, s53
        v_and_b32 v35, 1, v0
        v_lshl_add_u32 v34, v35, 7, v34
        v_add_u32 v34, s50, v34
        s_and_b32 s62, s7, 3
        s_lshl_b32 s62, s62, 3
        s_add_u32 s62, s62, s3
        s_mul_i32 s62, s62, 3584
        s_mul_i32 s63, s6, %d
        s_add_u32 s34, s62, s63
        v_mul_u32_u24 v35, 52, v0
        v_lshrrev_b32 v35, 8, v35
        v_lshlrev_b32 v35, 8, v35
        v_lshl_add_u32 v35, v0, 7, v35
        s_cmp_eq_u32 s57, 2
        s_cselect_b32 s35, 0x55555, 0xfffff""" % (128*896)
    pfx="""s_mov_b32 exec_lo, s35
        s_mov_b32 exec_hi, 0
        global_load_dword v62, v34, s[32:33]
        s_mov_b32 exec_lo, 0xfffff
        buffer_load_dword v63, v35, s[28:31], s34 offen offset:256
        s_mov_b64 exec, -1"""
    if PF: A(pfa.replace("s_cselect_b32 s35, 0x55555, 0xfffff","s_mov_b32 s35, 0xfffff\ns_cselect_b32 s35, 0x55555, s35"))
    if PF==1: A(pfx)
    stamp(A,1)
    srd(A, 40, 24, WS_SIZE)
    A("""s_lshl_b32 s63, s2, 3
    s_add_u32 s63, s63, s3
    s_mul_i32 s64, s63, 4682
    s_lshr_b32 s64, s64, 16
    s_mul_i32 s65, s64, 14
    s_sub_u32 s65, s63, s65
    s_mul_i32 s54, s64, 1821
    s_lshr_b32 s54, s54, 16
    s_mul_i32 s55, s54, 36
    s_sub_u32 s55, s64, s55
    s_lshr_b32 s69, s65, 1
    s_lshl_b32 s69, s69, 2
    s_add_u32 s69, s69, s54
    s_lshl_b32 s69, s69, 3
    s_add_u32 s69, s69, s55
    s_lshl_b32 s69, s69, 1
    s_lshr_b32 s68, s54, 1
    s_xor_b32 s68, s68, s65
    s_and_b32 s68, s68, 1
    s_xor_b32 s68, s68, 1
    s_add_u32 s69, s69, s68
    s_lshl_b32 s69, s69, 10
    s_add_u32 s69, s69, %d
    s_mul_i32 s66, s54, 28
    s_add_u32 s66, s66, s55
    s_lshl_b32 s66, s66, 4
    s_sub_u32 s56, s55, 28
    s_lshr_b32 s58, s56, 1
    s_lshl_b32 s54, s54, 2
    s_add_u32 s58, s58, s54
    s_mul_i32 s58, s58, 28
    s_and_b32 s56, s56, 1
    s_lshl_b32 s54, s56, 4
    s_add_u32 s58, s58, s54
    s_lshl_b32 s56, s56, 4
    s_sub_u32 s56, 64, s56
    s_cmp_lt_u32 s55, 28
    s_cselect_b32 s36, s18, s16
    s_cselect_b32 s37, s19, s17
    s_mov_b32 s38, %d
    s_cselect_b32 s38, %d, s38
    s_cselect_b32 s66, s66, s58
    s_cselect_b32 s56, 64, s56
    s_and_b32 s37, s37, 0xffff
    s_mov_b32 s39, 0x00020000
    s_mul_i32 s66, s66, 896
    s_lshl_b32 s67, s65, 6
    s_add_u32 s66, s66, s67
    s_mul_i32 s67, s65, 144
    s_add_u32 s67, s67, s64
    s_lshl_b32 s67, s67, 10
    s_add_u32 s67, s67, %d
    s_cmp_lt_u32 s55, 28
    s_cselect_b32 s67, s67, s69
    s_cmp_lt_u32 s63, 2016
    s_cselect_b32 s67, s67, 0x7fff0000
    v_cmp_gt_u32 vcc, s56, v0
    v_lshrrev_b32 v21, 2, v0
    v_mul_u32_u24 v21, 896, v21
    v_lshl_add_u32 v21, v3, 4, v21
    v_mov_b32 v22, 0x7fff0000
    v_cndmask_b32 v21, v22, v21, vcc
    s_lshl_b32 s68, s3, 10
    s_add_u32 s68, s68, %d
    s_mov_b32 m0, s68
    v_lshlrev_b32 v49, 4, v0
    buffer_load_dwordx4 v21, s[36:39], s66 offen lds""" % (WO_OFF-56*1024, 448*896, 1792*896, WF_OFF, TS))
    ES=int(os.environ.get("ES","1"))
    A("""s_lshl_b32 s26, s63, 10
    s_add_u32 s26, s26, %d
    v_mov_b32 v232, -1
    v_mov_b32 v233, -1
    v_mov_b32 v234, -1
    v_mov_b32 v235, -1""" % (OF_OFF))
    st1="buffer_store_dwordx4 v[232:235], v49, s[40:43], s26 offen%s" % SC
    st2="buffer_store_dwordx4 v[228:231], v49, s[40:43], s67 offen%s" % SC
    if not ES: A(st1)
    A("""v_bfe_u32 v20, v0, 1, 3
    v_xor_b32 v20, v20, v5
    v_lshlrev_b32 v20, 4, v20
    v_lshl_add_u32 v20, v6, 7, v20
    s_lshl_b32 s62, s46, 13
    v_add_u32 v20, s62, v20
    v_lshl_add_u32 v21, v5, 3, v2
    v_lshlrev_b32 v21, 8, v21
    v_xor_b32 v22, s47, v2
    v_lshl_add_u32 v21, v22, 6, v21
    v_and_b32 v22, 1, v1
    v_lshlrev_b32 v22, 5, v22
    v_lshl_add_u32 v22, v3, 3, v22
    v_add_u32 v21, v21, v22
    v_lshl_add_u32 v32, v5, 2, v2
    v_lshl_add_u32 v32, v32, 6, v22
    v_add_u32 v48, s68, v32""")
    for i in range(4):
        A("""s_xor_b32 s62, s48, %d
        s_lshl_b32 s69, s62, 5
        v_xor_b32 v%d, s69, v20
        s_mul_i32 s62, s62, 24576
        s_add_u32 s62, s62, %d
        v_add_u32 v%d, s62, v21""" % (i, 24+i, WB, 28+i))
    PK=int(os.environ.get("PK","0"))
    for r in (range(232,240) if PK else range(36,40)): A("v_mov_b32 v%d, 0" % r)
    A("""v_mov_b32 v33, 0x3f803f80
    v_cmp_eq_u32 vcc, 0, v6
    v_cmp_eq_u32 s[70:71], 20, v6
    s_mov_b32 s72, 0xffff0000
    s_mov_b32 s73, 0x07060302
    s_or_b64 vcc, vcc, s[70:71]
    s_mov_b32 s74, 0x%x
    v_cndmask_b32 v168, 0, v33, vcc
    v_mov_b32 v169, v168
    v_mov_b32 v170, v168
    v_mov_b32 v171, v168
    s_lshl_b32 s62, s46, 12
    s_add_u32 s62, s62, 16384
    v_lshlrev_b32 v44, 6, v6
    v_add_u32 v44, s62, v44
    s_lshl_b32 s69, s47, 4
    v_lshl_add_u32 v45, v5, 3, v44
    v_add_u32 v45, s69, v45
    s_lshl_b32 s62, s47, 9
    s_add_u32 s62, s62, 24576
    v_lshlrev_b32 v46, 2, v6
    v_add_u32 v46, s62, v46
    s_lshl_b32 s69, s46, 7
    v_add_u32 v47, s69, v46
    v_cmp_gt_u32 vcc, 32, v0
    s_lshl_b32 s75, s6, 2
    s_lshl_b32 s62, s46, 1
    s_add_u32 s75, s75, s62
    v_mov_b32 v190, 0
    v_mov_b32 v191, 0
    v_mov_b32 v194, 0
    v_mov_b32 v195, 0""" % fbits(1.0/448))
    def xr(P, tok): return (172 if P%4==0 else 128+16*(P%2))+4*tok
    def wr(P, hf): return 136+16*(P%2)+4*hf
    def reads(P):
        c,i=divmod(P,4); st=c%3; L=[]
        for hf in range(2):
            for z in range(2):
                L.append("ds_read_b64_tr_b16 v[%d:%d], v%d offset:%d" % (wr(P,hf)+2*z, wr(P,hf)+2*z+1, 28+i, st*8192+hf*4096+z*1024))
            L.append("ds_read_b128 %s, v%d offset:%d" % (r4(xr(P,hf)), 24+i, st*16384+hf*4096))
        return L
    so=[]
    for tok in range(2):
        for r in range(4):
            src=172+4*tok+r; t0=40+2*(r%2); t1=t0+1
            if PK:
                sa=232+4*tok; tt="v[%d:%d]" % (t0,t1)
                so+=["v_and_b32 v%d, s72, v%d" % (t0,src), "v_lshlrev_b32 v%d, 16, v%d" % (t1,src),
                    "v_pk_add_f32 v[%d:%d], v[%d:%d], %s" % (sa,sa+1,sa,sa+1,tt), "v_pk_fma_f32 v[%d:%d], %s, %s, v[%d:%d]" % (sa+2,sa+3,tt,tt,sa+2,sa+3)]
                continue
            so+=["v_and_b32 v%d, s72, v%d" % (t0,src), "v_lshlrev_b32 v%d, 16, v%d" % (t1,src),
                "v_add_f32 v%d, v%d, v%d" % (36+2*tok,36+2*tok,t0), "v_fmac_f32 v%d, v%d, v%d" % (37+2*tok,t0,t0),
                "v_add_f32 v%d, v%d, v%d" % (36+2*tok,36+2*tok,t1), "v_fmac_f32 v%d, v%d, v%d" % (37+2*tok,t1,t1)]
    fm=[]
    for st in (8,4,2):
        for tok in range(2):
            b=196+16*tok
            for j in range(st): fm.append("v_add_f32 v%d, v%d, v%d" % (b+j,b+j,b+j+st))
    seq="""v_mul_f32 v{s}, s74, v{s}
        v_mul_f32 v{q}, s74, v{q}
        v_fma_f32 v{q}, -v{s}, v{s}, v{q}
        v_max_f32 v{q}, 0, v{q}
        v_cvt_pk_bf16_f32 v{f}, -v{s}, -v{s}
        v_cvt_pk_bf16_f32 v{q}, v{q}, v{q}
        v_and_b32 v{q}, s72, v{q}
        v_add_f32 v{q}, 0x{eps:x}, v{q}
        v_cvt_pk_bf16_f32 v{q}, v{q}, v{q}
        v_and_b32 v{q}, s72, v{q}
        v_sqrt_f32 v{q}, v{q}
        v_mov_b32 v{f1}, v{f}
        v_cvt_pk_bf16_f32 v{q}, v{q}, v{q}
        v_and_b32 v{d}, s72, v{q}
        v_rcp_f32 v{r}, v{d}
        v_mov_b32 v{f2}, v{f}
        v_mov_b32 v{f3}, v{f}"""
    s0,s1=[seq.format(s=196+16*tok,q=197+16*tok,f=180+4*tok,f1=181+4*tok,f2=182+4*tok,f3=183+4*tok,d=54+tok,r=56+tok,eps=fbits(1e-5)).split("\n") for tok in range(2)]
    for a_,b_ in zip(s0,s1): fm+=[a_,b_]
    for hf in range(2):
        fm+="""v_add_f32 v{c}, v{c}, v{c1}
        v_cndmask_b32 v{c}, 0, v{c}, vcc
        v_and_b32 v58, s72, v{c}
        v_sub_f32 v59, v{c}, v58
        v_and_b32 v60, s72, v59
        v_sub_f32 v61, v59, v60
        v_perm_b32 v{f}, v60, v58, s73
        v_lshrrev_b32 v{f1}, 16, v61""".format(c=50+2*hf,c1=51+2*hf,f=188+4*hf,f1=189+4*hf).split("\n")
    A("s_waitcnt vmcnt(%d)\ns_barrier" % (8-ES))
    stamp(A,2)
    for x in reads(0): A(x)
    if PF==2: A(pfx)
    pend=dma(2)
    for P in range(28):
        c,i=divmod(P,4)
        if os.environ.get("FS"):
            if P in (4,8,12,20): stamp(A,{4:1,8:3,12:4,20:5}[P])
        elif P==12: stamp(A,3)
        rd=reads(P+1) if P<27 else []
        va=[]
        if i==3 and c<6:
            assert not pend
            A("s_waitcnt vmcnt(%d) lgkmcnt(0)\ns_barrier" % ((7 if ES and c in (1,2) else 6) if c+1<6 else 0))
            if c+3<=6: pend=dma(c+3)
        elif P==26:
            A("""s_mov_b32 exec_hi, 0
            ds_write_b32 v47, v160
            ds_write_b32 v47, v164 offset:256
            s_mov_b32 exec_hi, -1
            ds_write_b64 v45, v[36:37]
            ds_write_b64 v45, v[38:39] offset:2048
            s_waitcnt lgkmcnt(0)
            s_barrier""")
            ex=[]
            for tok in range(2):
                for q in range(4): ex.append("ds_read_b128 %s, v44 offset:%d" % (r4(196+16*tok+4*q), tok*2048+q*16))
            ex+=["ds_read2_b32 v[50:51], v46 offset0:0 offset1:32","ds_read2_b32 v[52:53], v46 offset0:64 offset1:96"]
            rd=ex+rd
        else:
            A("s_waitcnt lgkmcnt(0)")
        ns=len(so)
        if c<6:
            if i<3: va=so[ns*i//3//4*4:ns*(i+1)//3//4*4] if PK else so[16*i:16*i+16]
        elif i<2:
            va=so[ns//2*i:ns//2*(i+1)]
            if PK and i==1: va=va+["v_add_f32 v%d, v%d, v%d" % (36+j,232+2*j,233+2*j) for j in range(4)]
        if P==5: rd=rd+["ds_read_b64_tr_b16 v[228:229], v48","ds_read_b64_tr_b16 v[230:231], v48 offset:512"]
        if P==27: va=fm
        take=2 if i!=2 else len(pend)
        dm=pend[:take]; pend=pend[take:]
        if ES and P==6: dm=dm+[st1]
        if ES and P==10: dm=dm+[st2]
        mm=[]
        for hf in range(2):
            if i<2:
                mm.append("v_mfma_f32_16x16x32_bf16 %s, v[168:171], %s, %s" % (r4(160+4*hf),r4(wr(P,hf)),r4(160+4*hf) if P else "0"))
            for tok in range(2):
                acc=64+32*hf+16*tok
                mm.append("%s %s, %s, %s, %s" % (MF,r16(acc),r4(wr(P,hf)),r4(xr(P,tok)),r16(acc) if P else "0"))
        if P==25: mm=[mm[0],mm[3],mm[1],mm[2],mm[4],mm[5]]
        X=os.environ.get("X","")
        if "v" in X and P<27: va=[]
        if "c" in X: mm=[m for m in mm if "16x16" not in m]
        if "d" in X: dm=[]
        if "t" in X: rd=[r for r in rd if "tr_b16" not in r]
        if "x" in X: rd=[r for r in rd if "b128" not in r]
        n=len(mm); slots=[[] for _ in range(n)]
        nr=RDS
        for j,x in enumerate(rd): slots[min(n-1,j*nr//len(rd))].append(x)
        for j,x in enumerate(dm): slots[n-2+(j*2)//len(dm)].append(x)
        for j,x in enumerate(va): slots[j*n//len(va)].append(x)
        for j in range(n):
            A(mm[j])
            for x in slots[j]: A(x)
    if not os.environ.get("FS"): stamp(A,4)
    A("s_nop 1" if ES else st2+"\ns_nop 0")
    for tok in range(2):
        for hf in range(2):
            acc=64+32*hf+16*tok
            A("%s %s, %s, %s, %s" % (MF,r16(acc),r4(188+4*hf),r4(180+4*tok),r16(acc)))
    A("s_cmp_ge_u32 s7, 14\ns_cbranch_scc1 k1_qkv")
    if not os.environ.get("FS"): stamp(A,5)
    A("""v_mul_f32 v58, 0x%x, v56
    v_mul_f32 v59, 0x%x, v57
    s_mul_i32 s76, s75, %d
    s_lshl_b32 s62, s7, 2
    s_add_u32 s62, s62, s47
    s_lshl_b32 s62, s62, 11
    s_add_u32 s76, s76, s62
    s_add_u32 s76, s76, %d
    s_add_u32 s77, s76, %d
    s_nop 3""" % (fbits(-LOG2E), fbits(-LOG2E), 112*1024, HF_OFF, 112*1024))
    for tok in range(2):
        G=64+16*tok; U=96+16*tok
        for half in range(2):
            rs=range(8*half,8*half+8)
            PE=int(os.environ.get("PE","1"))
            p2=lambda r: "v[%d:%d]" % (r,r+1)
            if PE:
                for r in rs[::2]: A("v_pk_mul_f32 %s, %s, v[58:59] op_sel:[0,%d] op_sel_hi:[1,%d]" % (p2(G+r),p2(G+r),tok,tok))
            else:
                for r in rs: A("v_mul_f32 v%d, v%d, v%d" % (G+r,G+r,58+tok))
            for r in rs: A("v_exp_f32 v%d, v%d" % (G+r,G+r))
            if PE:
                for r in rs[::2]: A("v_pk_fma_f32 %s, %s, v[54:55], v[54:55] op_sel:[0,%d,%d] op_sel_hi:[1,%d,%d]" % (p2(G+r),p2(G+r),tok,tok,tok,tok))
            else:
                for r in rs: A("v_fma_f32 v%d, v%d, v%d, v%d" % (G+r,G+r,54+tok,54+tok))
            for r in rs: A("v_rcp_f32 v%d, v%d" % (G+r,G+r))
            if PE:
                for r in rs[::2]: A("v_pk_mul_f32 %s, %s, %s" % (p2(U+r),p2(U+r),p2(G+r)))
            else:
                for r in rs: A("v_mul_f32 v%d, v%d, v%d" % (U+r,U+r,G+r))
            o=128+8*tok+4*half
            for j in range(4): A("v_cvt_pk_bf16_f32 v%d, v%d, v%d" % (o+j,U+8*half+2*j,U+8*half+2*j+1))
            A("buffer_store_dwordx4 %s, v49, s[40:43], s%d offen offset:%d%s" % (r4(o),76+tok,half*1024,SC))
    if os.environ.get("QS"): stamp(A,3)
    stamp_out(A,7)
    A("s_endpgm")
    A.label("k1_qkv")
    if not os.environ.get("FS"): stamp(A,5)
    qs=LOG2E*28**-0.5
    A("""s_sub_u32 s76, s7, 14
    s_lshl_b32 s76, s76, 3
    s_add_u32 s76, s76, s47
    s_mov_b32 s77, 0x%x
    s_cmp_ge_u32 s76, 10
    s_cselect_b32 s78, 1.0, s77
    s_cselect_b32 s71, -1, 0
    s_mov_b32 s70, 0
    s_cmp_eq_u32 s76, 10
    s_cselect_b32 s79, 0x3f803f80, 0
    s_cselect_b32 s80, 0x3f80, 0
    s_or_b32 s79, s79, 0x3f80
    v_mov_b32 v40, s79
    v_mov_b32 v41, s80
    v_mul_f32 v58, s77, v56
    v_mul_f32 v59, s77, v57
    v_mul_f32 v60, s78, v56
    v_mul_f32 v61, s78, v57
    s_mul_i32 s62, s46, 49152
    s_add_u32 s62, s62, %d
    v_and_b32 v42, 15, v0
    s_lshl_b32 s69, s47, 2
    v_xor_b32 v42, s69, v42
    v_lshlrev_b32 v42, 4, v42
    v_lshl_add_u32 v42, v5, 3, v42
    v_lshl_add_u32 v42, v6, 9, v42
    v_add_u32 v42, s62, v42""" % (fbits(qs), WB+8192))
    for q in range(1,4): A("v_xor_b32 v%d, %d, v42" % (32+q, 16*q))
    A("v_mov_b32 v32, v42")
    for hf in range(2):
        for tok in range(2):
            a0=64+32*hf+16*tok; o=128+16*hf+8*tok
            for j in range(0,16,2): A("v_pk_mul_f32 v[%d:%d], v[%d:%d], v[%d:%d] op_sel:[0,%d] op_sel_hi:[1,%d]" % (a0+j,a0+j+1,a0+j,a0+j+1,58+2*hf,59+2*hf,tok,tok))
            for j in range(8): A("v_cvt_pk_bf16_f32 v%d, v%d, v%d" % (o+j,a0+2*j,a0+2*j+1))
            if hf: A("v_cndmask_b32 v%d, v%d, v40, s[70:71]\nv_cndmask_b32 v%d, v%d, v41, s[70:71]" % (o+6,o+6,o+7,o+7))
            for q in range(4): A("ds_write_b64 v%d, v[%d:%d] offset:%d" % (32+q,o+2*q,o+2*q+1,tok*24576+hf*256))
    if os.environ.get("QS"): stamp(A,1)
    A("""s_mul_i32 s62, s47, 24576
    s_lshl_b32 s69, s46, 13
    s_add_u32 s62, s62, s69
    s_add_u32 s62, s62, %d
    v_xor_b32 v43, v6, v5
    v_lshlrev_b32 v43, 4, v43
    v_lshl_add_u32 v43, v5, 9, v43
    v_add_u32 v43, s62, v43
    s_lshl_b32 s62, s6, 7
    s_add_u32 s62, s62, s49
    s_mul_i32 s62, s62, 896
    s_sub_u32 s69, s7, 14
    s_lshl_b32 s69, s69, 9
    s_add_u32 s81, s62, s69
    s_cmp_eq_u32 s7, 15
    s_cselect_b32 s69, 24, 32
    v_mul_u32_u24 v44, 896, v5
    v_lshl_add_u32 v44, v6, 4, v44
    v_cmp_gt_u32 vcc, s69, v6
    v_mov_b32 v45, 0x7fff0000
    s_waitcnt lgkmcnt(0)
    s_barrier
    v_cndmask_b32 v44, v45, v44, vcc""" % (WB+8192))
    if os.environ.get("QS"): stamp(A,2)
    KS=os.environ.get("KS","")
    A("s_cmp_eq_u32 s7, 14\ns_cbranch_scc1 k1_fin")
    A("""s_lshl_b32 s77, s6, 2
    s_add_u32 s77, s77, s45
    s_lshl_b32 s77, s77, 12
    s_add_u32 s77, s77, %d
    s_mul_i32 s62, s45, 24576
    s_add_u32 s62, s62, %d
    s_cmp_eq_u32 s44, 1
    s_cbranch_scc1 k1_v
    v_and_b32 v52, 15, v0
    v_xor_b32 v52, v52, v5
    v_xor_b32 v52, 24, v52
    v_lshlrev_b32 v52, 4, v52
    v_lshl_add_u32 v52, v6, 9, v52
    v_add_u32 v52, s62, v52
    v_xor_b32 v53, 32, v52
    ds_read_b128 v[96:99], v52
    ds_read_b128 v[100:103], v53
    s_waitcnt lgkmcnt(0)
    buffer_store_dwordx4 v[96:99], v49, s[40:43], s77 offen%s
    buffer_store_dwordx4 v[100:103], v49, s[40:43], s77 offen offset:1024%s
    s_branch k1_fin""" % (KV_OFF, WB+8192, KS, KS))
    A.label("k1_v")
    A("""v_lshl_add_u32 v52, v5, 2, v2
    v_and_b32 v53, 1, v1
    v_lshlrev_b32 v53, 1, v53
    v_bfe_u32 v55, v0, 1, 1
    v_add3_u32 v53, v53, v55, 28
    v_xor_b32 v53, v53, v52
    v_lshlrev_b32 v53, 4, v53
    v_lshl_add_u32 v53, v52, 9, v53
    v_and_b32 v55, 1, v0
    v_lshl_add_u32 v53, v55, 3, v53
    v_add_u32 v52, s62, v53
    v_xor_b32 v53, 128, v52
    ds_read_b64_tr_b16 v[96:97], v52
    ds_read_b64_tr_b16 v[98:99], v53 offset:4096
    ds_read_b64_tr_b16 v[100:101], v52 offset:8192
    ds_read_b64_tr_b16 v[102:103], v53 offset:12288
    s_waitcnt lgkmcnt(0)
    buffer_store_dwordx4 v[96:99], v49, s[40:43], s77 offen offset:2048%s
    buffer_store_dwordx4 v[100:103], v49, s[40:43], s77 offen offset:3072%s""" % (KS, KS))
    A.label("k1_fin")
    for i in range(8):
        A("v_xor_b32 v45, %d, v43\nds_read_b128 %s, v45 offset:%d" % (32*i, r4(64+4*i), i*1024))
    for i in range(8):
        A("s_waitcnt lgkmcnt(%d)\nbuffer_store_dwordx4 %s, v44, s[40:43], s81 offen%s\ns_add_u32 s81, s81, 1792" % (7-i, r4(64+4*i), SC if i<int(os.environ.get("QP","0")) else ""))
    if os.environ.get("QS"): stamp(A,3)
    stamp_out(A,7)
    A.label("k1_done")
    A("s_endpgm")
    return kernel_desc(name, 240, 102)
```

```python
from asmlib import *
from k1 import *
K2_LDS=102656
K2_BLOCK=256
EX2=49152; FL=98304; MX=98560
def a4(i): return "a[%d:%d]" % (i,i+3)
def a16(i): return "a[%d:%d]" % (i,i+15)
OOB=0x7fff0000
OSC=os.environ.get("OSC","")
QM=int(os.environ.get("QM","1")); LP=int(os.environ.get("LP","2")); GS=int(os.environ.get("GS","28"))
class VM:
    def __init__(s): s.log=[]
    def issue(s, tag): s.log.append(tag)
    def need(s, tags):
        idx=max(i for i,t in enumerate(s.log) if t in tags and all(tt not in tags or True for tt in []) )
        return len(s.log)-1-idx
def gen_k2(A, name="k2_kernel"):
    kernel_head(A, name)
    A("s_cmp_ge_u32 s2, 256\ns_cbranch_scc1 k2_done")
    stamp(A,0); stamp_rt(A,7)
    A("""s_load_dwordx2 s[24:25], s[0:1], 88
    s_load_dwordx2 s[8:9], s[0:1], 0
    s_load_dwordx2 s[10:11], s[0:1], 72
    v_readfirstlane_b32 s3, v0
    v_and_b32 v0, 63, v0
    v_lshlrev_b32 v2, 4, v0
    v_lshrrev_b32 v5, 5, v0
    v_and_b32 v6, 31, v0
    s_lshr_b32 s3, s3, 6
    s_and_b32 s4, s2, 7
    s_lshl_b32 s4, s4, 2
    s_bfe_u32 s5, s2, 0x20003
    s_add_u32 s4, s4, s5
    s_lshr_b32 s5, s2, 5
    s_xor_b32 s6, s3, 3
    s_mov_b32 s72, 0xffff0000
    s_mov_b32 s73, 0x07060302
    s_mov_b32 s60, 0
    s_lshl_b32 s7, s4, 3
    s_add_u32 s7, s7, s5
    s_mul_i32 s12, s7, 7168
    %s
    v_mul_u32_u24 v3, 896, v1
    v_mad_u32_u24 v3, v4, 56, v3
    v_lshl_add_u32 v3, v5, 4, v3
    s_lshl_b32 s46, s3, 16
    s_add_u32 s46, s46, %d
    s_mov_b32 s47, %d""" % ("v_lshrrev_b32 v1, 2, v6\nv_and_b32 v4, 3, v0" if QM else "v_and_b32 v1, 7, v0\nv_lshrrev_b32 v4, 3, v6", KV_OFF, KV_OFF))
    for g in range(4): A("s_xor_b32 s%d, s6, %d\ns_mul_i32 s%d, s%d, 224\ns_add_u32 s%d, s%d, s12" % (52+g,g,52+g,52+g,52+g,52+g))
    A("s_waitcnt lgkmcnt(0)")
    srd(A, 40, 24, WS_SIZE)
    Q=lambda g,s: 16+8*g+4*s
    O=lambda g: 48+16*g
    S=lambda b: 112+16*b
    P=lambda b: 144+8*b
    KV=lambda st,j: 160+16*st+4*j
    F=lambda st,j: 64+16*st+4*j
    T=lambda g: [112,128,224,O(0)][g]
    vm=VM()
    A("buffer_load_dwordx4 %s, v2, s[40:43], s47 offen\nbuffer_load_dwordx4 %s, v2, s[40:43], s47 offen offset:1024" % (r4(KV(3,0)), r4(KV(3,1))))
    for g in range(4):
        for s_ in range(2):
            A("buffer_load_dwordx4 %s, v3, s[40:43], s%d offen offset:%d" % (r4(Q(g,s_)), 52+g, s_*32))
    VO=[2,248,249,250]
    def kvload(st,pro=False): return [("buffer_load_dwordx4 %s, v%d, s[40:43], s%d offen offset:%d" % (r4(KV(st,j)), VO[st], 48 if (st==3 or pro) else 51, j*1024), ("kv",st,j)) for j in range(4)]
    def gload(st): return [("buffer_load_dwordx4 %s, v%d, s[40:43], s%d offen offset:%d" % (a4(F(st,j)), VO[st//4], 68+j, (st%4)*1024), ("g",st,j)) for j in range(4)]
    def em(L):
        for x,t in L: A(x); vm.issue(t)
    for k in range(1,4): A("v_add_u32 v%d, %d, v2" % (VO[k], 4096*k))
    A.label("k2_restart")
    A("s_mov_b32 s48, s46\ns_add_u32 s51, s46, 16384")
    em(kvload(0,1)); em(kvload(1,1)); em(kvload(2,1))
    A("""s_and_b32 s13, s6, 1
    s_lshr_b32 s14, s6, 1
    s_lshl_b32 s15, s4, 1
    s_add_u32 s16, s15, s13
    s_xor_b32 s17, s16, 1
    s_mul_i32 s18, s3, %d
    s_add_u32 s18, s18, %d
    s_mul_i32 s64, s16, %d
    s_add_u32 s64, s64, s18
    s_mul_i32 s65, s17, %d
    s_add_u32 s65, s65, s18
    s_lshl_b32 s15, s5, 1
    s_add_u32 s19, s15, s14
    s_xor_b32 s20, s19, 1
    s_mul_i32 s18, s3, %d
    s_add_u32 s18, s18, %d
    s_mul_i32 s66, s19, %d
    s_add_u32 s66, s66, s18
    s_mul_i32 s67, s20, %d
    s_add_u32 s67, s67, s18
    s_cmp_lt_u32 s5, 7
    s_cselect_b32 s64, s64, 0x%x
    s_cselect_b32 s65, s65, 0x%x
    s_cselect_b32 s66, s66, 0x%x
    s_cselect_b32 s67, s67, 0x%x
    s_lshl_b32 s21, s5, 2
    s_add_u32 s21, s21, s3
    s_lshl_b32 s21, s21, 14
    s_add_u32 s21, s21, %d
    s_mul_i32 s61, s17, %d
    s_lshl_b32 s62, s20, 6
    s_add_u32 s74, s61, s62
    v_mul_u32_u24 v7, 896, v6
    v_lshl_add_u32 v7, v5, 4, v7""" % (28*1024, HF_OFF, 112*1024, 112*1024, 36*1024, WF_OFF, 144*1024, 144*1024, OOB,OOB,OOB,OOB, WO_OFF, 32*896))
    A("s_mov_b32 s68, s64\ns_mov_b32 s69, s65\ns_mov_b32 s70, s66\ns_mov_b32 s71, s67")
    for tau in range(3): A("s_xor_b32 s61, s6, %d\ns_mul_i32 s61, s61, 12288\ns_add_u32 s61, s61, %d\nv_add_u32 v%d, s61, v2" % (tau, tau*4096, 251+tau))
    A("""s_mul_i32 s61, s3, 12288
    v_add_u32 v254, s61, v2
    s_mov_b32 s22, 0x5e800000
    s_lshl_b32 s61, s3, 2
    s_add_u32 s61, s61, %d
    v_mov_b32 v3, s61
    s_and_b32 s61, s7, 3
    s_lshl_b32 s61, s61, 3
    v_add_u32 v255, s61, v1
    v_lshl_add_u32 v255, v5, 5, v255
    v_lshlrev_b32 v255, 4, v255
    v_lshl_add_u32 v255, v4, 11, v255
    s_lshr_b32 s75, s7, 2
    s_lshl_b32 s75, s75, 15
    s_lshl_b32 s61, s3, 13
    s_add_u32 s61, s61, %d
    s_add_u32 s75, s75, s61
    s_lshl_b32 s76, s16, 15
    s_add_u32 s76, s76, s61
    s_lshl_b32 s77, s17, 15
    s_add_u32 s77, s77, s61
    s_mov_b32 s23, -2
    s_mov_b32 s80, 0""" % (FL, OF_OFF))
    srd(A, 28, 8, 2048*896)
    srd(A, 32, 10, 2048*896)
    for r in list(range(P(1),P(1)+8))+list(range(KV(3,2),KV(3,2)+8)): A("v_mov_b32 v%d, 0" % r)
    A("s_nop 1")
    for r in range(0,176,16): A("%s %s, %s, %s, 0" % (MF, a16(r), r4(P(1)), r4(P(1))))
    for r in range(64,112,16): A("%s %s, %s, %s, 0" % (MF, r16(r), r4(P(1)), r4(P(1))))
    def zero_mslots():
        A("s_mov_b32 exec_lo, 0")
        for g in range(4): A("v_mov_b32 v%d, 0\nv_mov_b32 v%d, 0" % (Q(g,1)+2, Q(g,1)+3))
        A("s_mov_b32 exec_lo, -1")
    M_=lambda g: 8+g
    def patch_all(off):
        t=lambda g,k: P(0)+2*g+k
        for g in range(4): A("v_sub_f32 v%d, %s, v%d" % (M_(g), off, M_(g)))
        for g in range(4): A("v_and_b32 v%d, s72, v%d" % (t(g,0), M_(g)))
        for g in range(4): A("v_sub_f32 v%d, v%d, v%d" % (M_(g), M_(g), t(g,0)))
        for g in range(4): A("v_and_b32 v%d, s72, v%d" % (t(g,1), M_(g)))
        for g in range(4): A("v_sub_f32 v%d, v%d, v%d" % (M_(g), M_(g), t(g,1)))
        A("s_mov_b32 exec_lo, 0")
        for g in range(4): A("v_perm_b32 v%d, v%d, v%d, s73\nv_lshrrev_b32 v%d, 16, v%d" % (Q(g,1)+2, t(g,1), t(g,0), Q(g,1)+3, M_(g)))
        A("s_mov_b32 exec_lo, -1")
    def max16(dst, b, first):
        if first: A("v_max_f32 v%d, v%d, v%d" % (dst, b, b+1))
        else: A("v_max3_f32 v%d, v%d, v%d, v%d" % (dst, dst, b, b+1))
        for j in range(2,16,2): A("v_max3_f32 v%d, v%d, v%d, v%d" % (dst, dst, b+j, b+j+1))
    def xhalf_all():
        for g in range(4): A("v_mov_b32 v%d, v%d" % (12+g, M_(g)))
        A("s_nop 0")
        for g in range(4): A("v_permlane32_swap_b32 v%d, v%d" % (M_(g), 12+g))
        for g in range(4): A("v_max_f32 v%d, v%d, v%d" % (M_(g), M_(g), 12+g))
    def qk_all():
        for g in range(4):
            A("%s %s, %s, %s, 0" % (MF, r16(T(g)), r4(KV(3,0)), r4(Q(g,0))))
            A("%s %s, %s, %s, %s" % (MF, r16(T(g)), r4(KV(3,1)), r4(Q(g,1)), r16(T(g))))
    A("s_cmp_lg_u32 s60, 0\ns_cbranch_scc1 k2_skipm0")
    A("s_waitcnt vmcnt(12)")
    zero_mslots()
    A("s_nop 0")
    qk_all()
    A("s_nop 5")
    for g in range(4): max16(M_(g), T(g), True)
    xhalf_all(); patch_all("0xc2800000")
    A.label("k2_skipm0")
    A("%s %s, %s, %s, 0" % (MF, r16(O(0)), r4(P(1)), r4(P(1))))
    A("s_waitcnt vmcnt(10)\ns_mov_b32 s49, 0")
    A("%s %s, %s, %s, 0" % (MF, r16(S(0)), r4(KV(0,0)), r4(Q(0,0))))
    A("%s %s, %s, %s, %s" % (MF, r16(S(0)), r4(KV(0,1)), r4(Q(0,1)), r16(S(0))))
    def body():
        items=[]; gi=0; pend=[]
        for u in range(16):
            t,g=divmod(u,4); tn,gn=divmod((u+1)%16,4); tp_,gp=divmod((u-1)%16,4)
            b=u%2; s0=S(b); s1=S(1-b)
            M=[("%s %s, %s, %s, 0" % (MF, r16(s1), r4(KV(tn,0)), r4(Q(gn,0))), [("kv",tn,0)]),
               ("%s %s, %s, %s, %s" % (MF, r16(s1), r4(KV(tn,1)), r4(Q(gn,1)), r16(s1)), [("kv",tn,1)]),
               ("%s %s, %s, %s, %s" % (MF, r16(O(gp)), r4(KV(tp_,2)), r4(P(1-b)), r16(O(gp))), [("kv",tp_,2)]),
               ("%s %s, %s, %s, %s" % (MF, r16(O(gp)), r4(KV(tp_,3)), r4(P(1-b)+4), r16(O(gp))), [("kv",tp_,3)])]
            def G():
                nonlocal gi
                j,tau=divmod(gi,4); ct,tok=divmod(tau,2); gi+=1
                return ("%s %s, %s, %s, %s" % (MF, a16(16*tau), a4(F(j,2+ct)), a4(F(j,tok)), a16(16*tau)), [("g",j,2+ct),("g",j,tok)], j if tau==3 else None)
            e=lambda j: "v_exp_f32 v%d, v%d" % (s0+j,s0+j)
            c=lambda j: "v_cvt_pk_bf16_f32 v%d, v%d, v%d" % (P(b)+j,s0+2*j,s0+2*j+1)
            if g!=3:
                order=[M[0],"G",M[1],M[2],"G",M[3]]
                gaps=[[e(0),e(1),e(2),c(0)],[e(3),e(4),e(5),c(1)],[e(6),e(7),e(8),c(2)],[e(9),e(10),e(11),c(3)],[e(12),e(13),c(4),c(5)],[e(14),e(15),c(6),c(7)]]
            else:
                order=[M[0],M[1],"G",M[2],M[3]]
                gaps=[[e(0),e(1),e(2),e(3)],[e(4),e(5),e(6),c(0),c(1)],[e(7),e(8),e(9),c(2),c(3)],[e(10),e(11),e(12),c(4),c(5)],[e(13),e(14),e(15),c(6),c(7)]]
            if g==1: pend=kvload((t+3)%4)+pend
            for m,gp_ in zip(order,gaps):
                if m=="G":
                    m=G()
                    items.append(("m",m[0],m[1]))
                    if m[2] is not None: pend=pend+gload(m[2])
                else: items.append(("m",m[0],m[1]))
                for n_,x in enumerate(gp_):
                    if n_==LP and pend: y=pend.pop(0); items.append(("l",y[0],y[1]))
                    items.append(("v",x,None))
        for x in pend: items.append(("l",x[0],x[1]))
        return items
    items=body()
    A("s_waitcnt vmcnt(4)"); vm.log=vm.log[-4:]
    em([("buffer_load_dwordx4 %s, v250, s[40:43], s21 offen offset:%d" % (a4(176+4*j), j*1024), ("x",j)) for j in range(4)])
    em([("buffer_load_dwordx4 %s, v7, s[28:31], s74 offen offset:%d" % (r4(240+4*j), j*32), ("x",4+j)) for j in range(2)])
    waits={}
    for it in range(3):
        for n,(k,x,t) in enumerate(items):
            if k=="l": vm.issue(t)
            elif k=="m":
                tt=[z for z in t if z in vm.log]
                if tt: waits[n]=min(waits.get(n,63), min(len(vm.log)-1-max(i for i,y in enumerate(vm.log) if y==z) for z in tt))
    stamp(A,1)
    if os.environ.get("TLP")=="2": stamp_rt(A,7)
    A.raw(".p2align 6"); A.label("k2_loop")
    cur=63
    for n,(k,x,t) in enumerate(items):
        if k=="m" and n in waits and waits[n]<cur:
            A("s_waitcnt vmcnt(%d)" % waits[n]); cur=waits[n]
        if k=="l": cur+=1
        X2=os.environ.get("X2","")
        if k=="l" and t[0]=="g" and "g" in X2: continue
        if k=="l" and t[0]=="kv" and "k" in X2: continue
        if k=="l" and "s" in X2: x=x.split("\n")[0]
        if k=="m" and t[0][0]=="g" and "e" in X2: continue
        if k=="m" and "m" in X2: continue
        if k=="v" and "v" in X2: continue
        if k=="v" and "x" in X2 and "exp" in x: x=x.replace("v_exp_f32","v_mov_b32")+"\n"+x.replace("v_exp_f32","v_mov_b32")
        A(x)
    A("""s_add_u32 s49, s49, 1
    s_mov_b32 s48, s51
    s_add_u32 s51, s51, 16384
    s_add_u32 s68, s68, 7168
    s_add_u32 s69, s69, 7168
    s_add_u32 s70, s70, 7168
    s_add_u32 s71, s71, 7168
    s_cmp_eq_u32 s49, 3
    s_cselect_b32 s51, s21, s51
    s_cmp_lt_u32 s49, 4
    s_cbranch_scc1 k2_loop""")
    stamp(A,2)
    A("%s %s, %s, %s, %s" % (MF, r16(O(3)), r4(KV(3,2)), r4(P(1)), r16(O(3))))
    A("%s %s, %s, %s, %s" % (MF, r16(O(3)), r4(KV(3,3)), r4(P(1)+4), r16(O(3))))
    WO=lambda k,ct: r4(160+8*k+4*ct) if k<6 else a4(176+8*(k-6)+4*ct)
    for g in range(3):
        for q in range(4): A("ds_write_b128 v%d, %s offset:%d" % (251+g, r4(O(g)+4*q), q*1024))
    A("""v_add_f32 v8, v%d, v%d
    v_add_f32 v9, v%d, v%d
    v_add_f32 v8, v8, v9
    v_cmp_nge_f32 vcc, s22, v8
    v_mov_b32 v10, %d
    s_nop 0
    v_mov_b32 v8, vcc_hi
    ds_write_b32 v3, v8""" % (O(0)+12,O(1)+12,O(2)+12,O(3)+12,FL))
    A("""s_waitcnt lgkmcnt(0)
    s_barrier
    ds_read_b128 v[12:15], v10""")
    for g in range(3):
        for q in range(4): A("ds_read_b128 %s, v254 offset:%d" % (r4(O(g)+4*q), g*4096+q*1024))
    A("""s_waitcnt lgkmcnt(12)
    v_or_b32 v12, v12, v13
    v_or3_b32 v12, v12, v14, v15
    s_nop 0
    v_readfirstlane_b32 s63, v12
    s_nop 0
    s_cmp_lg_u32 s63, 0
    s_cselect_b32 s63, 1, 0
    s_cmp_gt_u32 s63, s60
    s_cbranch_scc1 k2_fb""")
    o3=O(3)
    for g in range(3):
        A("s_waitcnt lgkmcnt(%d)" % (8-4*g))
        for j in ([12]+[j for j in range(16) if j!=12]): A("v_add_f32 v%d, v%d, v%d" % (o3+j,o3+j,O(g)+j))
    A("v_mov_b32 v9, v%d\nv_mov_b32 v10, v%d\ns_nop 1\nv_permlane32_swap_b32 v9, v10\ns_nop 0\nv_rcp_f32 v10, v10\ns_nop 0" % (o3+12,o3+12))
    for j in range(16): A("v_mul_f32 v%d, v%d, v10" % (o3+j,o3+j))
    for j in range(8): A("v_cvt_pk_bf16_f32 v%d, v%d, v%d" % (48+j,o3+2*j,o3+2*j+1))
    for j in (0,3,4,7): A("v_min_u32 v%d, s23, v%d" % (48+j,48+j))
    A("buffer_store_dwordx4 v[48:51], v255, s[40:43], s75 offen sc1\nbuffer_store_dwordx4 v[52:55], v255, s[40:43], s75 offen offset:1024 sc1".replace(" sc1","" if os.environ.get("LOC") else " sc1"))
    if os.environ.get("TLP")=="1": stamp_rt(A,7)
    A("s_cmp_ge_u32 s5, 7\ns_cbranch_scc1 k2_fin")
    stamp(A,3)
    OFR=lambda k,tok: (112+8*k if k<6 else 208+8*(k-6))+4*tok
    GM=[]
    for j in range(7):
        for tau in range(4):
            ct,tok=divmod(tau,2); GM.append("%s %s, %s, %s, %s" % (MF, a16(16*tau), a4(F(j,2+ct)), a4(F(j,tok)), a16(16*tau)))
    A("s_waitcnt vmcnt(2)")
    for x in GM[:GS]: A(x)
    if os.environ.get("DR"): A("s_waitcnt vmcnt(0)")
    for k in range(8):
        for tok in range(2): A("buffer_load_dwordx4 %s, v%d, s[40:43], s%d offen offset:%d%s" % (r4(OFR(k,tok)), VO[k//4], 76+tok, (k%4)*1024, "" if os.environ.get("PL") else " sc1"))
    for x in GM[GS:]: A(x)
    A("s_nop 15\ns_branch k2_poll2")
    A.label("k2_poll")
    for k in range(8):
        for tok in range(2): A("buffer_load_dwordx4 %s, v%d, s[40:43], s%d offen offset:%d sc1" % (r4(OFR(k,tok)), VO[k//4], 76+tok, (k%4)*1024))
    A.label("k2_poll2")
    A("v_mov_b32 v9, 0")
    for k in range(8):
        A("s_waitcnt vmcnt(%d)" % (14-2*k))
        for tau in range(4):
            ct,tok=divmod(tau,2)
            A("%s %s, %s, %s, %s" % (MF, a16(192+16*tau), WO(k,ct), r4(OFR(k,tok)), a16(192+16*tau) if k else a16(16*tau)))
            if tau<2: A("v_max3_u32 v9, v9, v%d, v%d" % (OFR(k,tau), OFR(k,tau)+3))
    A("""v_cmp_eq_u32 vcc, -1, v9
    s_add_u32 s80, s80, 1
    s_cmp_gt_u32 s80, 0x40000
    s_cbranch_scc1 k2_go
    s_nop 1
    s_cbranch_vccnz k2_poll""")
    A.label("k2_go")
    stamp(A,4)
    if os.environ.get("TLP")=="3": stamp_rt(A,7)
    A("s_nop 7")
    for tau in range(3):
        for q in range(4): A("ds_write_b128 v%d, %s offset:%d" % (251+tau, a4(192+16*tau+4*q), EX2+q*1024))
    for j in range(16): A("v_accvgpr_read_b32 v%d, a%d" % (o3+j, 240+j))
    for j in range(8): A("v_lshlrev_b32 v%d, 16, v%d\nv_and_b32 v%d, s72, v%d" % (224+2*j,240+j,225+2*j,240+j))
    A("s_waitcnt lgkmcnt(0)\ns_barrier")
    for g in range(3):
        for q in range(4): A("ds_read_b128 %s, v254 offset:%d" % (r4(O(g)+4*q), EX2+g*4096+q*1024))
    for g in range(3):
        A("s_waitcnt lgkmcnt(%d)" % (8-4*g))
        for j in range(16): A("v_add_f32 v%d, v%d, v%d" % (o3+j,o3+j,O(g)+j))
    A("s_nop 0")
    for sp in range(2):
        for i in range(4): A("v_permlane32_swap_b32 v%d, v%d" % (o3+8*sp+i, o3+8*sp+4+i))
    for j in range(16): A("v_add_f32 v%d, v%d, v%d" % (o3+j,o3+j,224+j))
    for j in range(8): A("v_cvt_pk_bf16_f32 v%d, v%d, v%d" % (48+j,o3+2*j,o3+2*j+1))
    stamp(A,5)
    A("buffer_store_dwordx4 v[48:51], v7, s[32:35], s74 offen%s\nbuffer_store_dwordx4 v[52:55], v7, s[32:35], s74 offen offset:32%s" % (OSC,OSC))
    A.label("k2_fin")
    stamp_out(A,7,kidx=1)
    A.label("k2_done")
    A("s_endpgm")
    A.label("k2_fb")
    A("s_mov_b32 s60, 1\ns_waitcnt vmcnt(0) lgkmcnt(0)")
    zero_mslots()
    A("s_mov_b32 s48, s46\ns_mov_b32 s49, 0")
    for g in range(4): A("v_mov_b32 v%d, 0xff800000" % M_(g))
    A.label("k2_fb_loop")
    A("buffer_load_dwordx4 %s, v2, s[40:43], s48 offen\nbuffer_load_dwordx4 %s, v2, s[40:43], s48 offen offset:1024\ns_add_u32 s48, s48, 4096\ns_waitcnt vmcnt(0)" % (r4(KV(3,0)), r4(KV(3,1))))
    qk_all()
    A("s_nop 5")
    for g in range(4): max16(M_(g), T(g), False)
    A("s_add_u32 s49, s49, 1\ns_cmp_lt_u32 s49, 16\ns_cbranch_scc1 k2_fb_loop")
    xhalf_all()
    A("v_lshlrev_b32 v251, 2, v0\ns_lshl_b32 s62, s3, 10")
    for g in range(4):
        A("s_xor_b32 s61, s6, %d\ns_lshl_b32 s61, s61, 8\ns_add_u32 s61, s61, %d\nv_add_u32 v%d, s61, v251\nv_add_u32 v252, s62, v%d\nds_write_b32 v252, v%d" % (g, MX, 12+g, 12+g, M_(g)))
    A("s_waitcnt lgkmcnt(0)\ns_barrier")
    for g in range(4):
        for w in range(4): A("ds_read_b32 v%d, v%d offset:%d" % (112+4*g+w, 12+g, w*1024))
        A("s_waitcnt lgkmcnt(0)")
        A("v_max3_f32 v%d, v%d, v%d, v%d\nv_max_f32 v%d, v%d, v%d" % (M_(g),112+4*g,113+4*g,114+4*g,M_(g),M_(g),115+4*g))
    patch_all("0")
    A("s_branch k2_restart")
    return kernel_desc(name, 512, 102, 256)
```

```python
from asmlib import *
QS_OFF=0; KV_OFF=0x200000; WF_OFF=0x240000; OF_OFF=0x440000; WO_OFF=0x640000; HF_OFF=0xA00000; WS_SIZE=0x1100000
LOG2E=1.4426950408889634
import struct, os
def fbits(x): return struct.unpack("<I", struct.pack("<f", x))[0]
K1_LDS=155648
RDS=int(os.environ.get("RDS","1"))
SC=os.environ.get("SC"," sc1")
MF="v_mfma_f32_32x32x16_bf16"
def r4(i): return "v[%d:%d]" % (i,i+3)
def r16(i): return "v[%d:%d]" % (i,i+15)
def interleave(main, fill):
    out=[]; n=len(main); k=0
    for i,m in enumerate(main):
        out.append(m)
        tgt=(len(fill)*(i+1)+n-1)//n
        while k<tgt: out.append(fill[k]); k+=1
    return out
def merge(a, b):
    out=[]; i=j=0
    while i<len(a) or j<len(b):
        if j>=len(b) or (i<len(a) and i*len(b)<=j*len(a)): out.append(a[i]); i+=1
        else: out.append(b[j]); j+=1
    return out
def gen_k1(A, name="k1_kernel", sentinel=False):
    WB=49152; TS=147456
    kernel_head(A, name)
    A("s_cmp_ge_u32 s2, 256\ns_cbranch_scc1 k1_done")
    stamp(A,0); stamp_rt(A,7)
    A("""s_load_dwordx8 s[8:15], s[0:1], 0
    s_load_dwordx4 s[20:23], s[0:1], 48
    s_load_dwordx2 s[16:17], s[0:1], 32
    s_load_dwordx2 s[18:19], s[0:1], 64
    s_load_dwordx2 s[24:25], s[0:1], 88
    v_readfirstlane_b32 s3, v0
    v_and_b32 v0, 63, v0
    s_and_b32 s4, s2, 7
    s_lshr_b32 s5, s2, 3
    s_lshr_b32 s3, s3, 6
    s_and_b32 s6, s4, 1
    s_lshl_b32 s6, s6, 3
    s_and_b32 s7, s5, 7
    s_add_u32 s6, s6, s7
%s
    s_lshr_b32 s44, s3, 2
    s_and_b32 s45, s3, 3
    s_and_b32 s46, s3, 1
    s_lshr_b32 s47, s3, 1
    s_lshl_b32 s48, s46, 1
    s_xor_b32 s48, s47, s48
    v_lshrrev_b32 v1, 4, v0
    v_bfe_u32 v2, v0, 2, 2
    v_and_b32 v3, 3, v0
    v_xor_b32 v4, v2, v1
    v_lshrrev_b32 v5, 5, v0
    v_and_b32 v6, 31, v0
    s_lshl_b32 s49, s3, 4
    v_lshrrev_b32 v7, 3, v0
    v_add_u32 v7, s49, v7
    v_mul_u32_u24 v8, 896, v7
    v_and_b32 v10, 7, v0
    v_xor_b32 v11, v10, v1
    v_lshl_add_u32 v8, v11, 4, v8
    v_xor_b32 v9, 64, v8
    v_add_u32 v9, 7168, v9""" % ("""s_lshr_b32 s7, s4, 1
    s_lshl_b32 s7, s7, 2
    s_lshr_b32 s5, s5, 3
    s_add_u32 s7, s7, s5""" if os.environ.get("SP","1")=="0" else """s_lshr_b32 s44, s4, 2
    s_bfe_u32 s45, s4, 0x10001
    s_mul_i32 s46, s44, 7
    s_lshl_b32 s47, s45, 2
    s_add_u32 s47, s47, s46
    s_add_u32 s46, s46, 3
    s_add_u32 s44, s44, 14
    s_lshr_b32 s7, s7, 2
    s_cmp_eq_u32 s7, s45
    s_cselect_b32 s46, s46, s44
    s_lshr_b32 s5, s5, 3
    s_add_u32 s47, s47, s5
    s_sub_u32 s47, s47, 1
    s_cmp_eq_u32 s5, 0
    s_cselect_b32 s7, s46, s47"""))
    A("""s_lshl_b32 s50, s7, 8
    s_sub_u32 s51, s7, 14
    s_lshl_b32 s51, s51, 9
    s_lshl_b32 s52, s44, 8
    s_add_u32 s51, s51, s52
    s_cmp_lt_u32 s7, 14
    s_movk_i32 s53, 896
    s_cselect_b32 s53, 3584, s53
    s_cselect_b32 s50, s50, s51
    s_lshl_b32 s57, s7, 1
    s_add_u32 s57, s57, s44
    s_cmp_eq_u32 s57, 31
    s_cselect_b32 s57, 2, 100
    v_mov_b32 v13, s53
    v_lshlrev_b32 v20, 6, v4
    v_add_u32 v20, s50, v20
    v_cmp_le_u32 vcc, s57, v4
    v_mov_b32 v17, 0
    v_mov_b32 v19, 0
    v_mov_b32 v21, 56
    v_cndmask_b32 v13, v13, v21, vcc
    v_cndmask_b32 v20, v20, v17, vcc
    s_lshl_b32 s58, s45, 4
    v_add_u32 v21, s58, v1
    v_mul_lo_u32 v21, v21, v13
    v_add_u32 v20, v20, v21
    v_lshl_add_u32 v16, v3, 4, v20
    v_cmp_eq_u32 s[70:71], s57, v4
    s_mul_i32 s59, s6, %d
    s_lshl_b32 s60, s3, 11
    s_mul_i32 s61, s45, 24576
    s_lshl_b32 s62, s44, 12
    s_add_u32 s61, s61, s62
    s_add_u32 s61, s61, %d
    s_waitcnt lgkmcnt(0)
    s_cmp_eq_u32 s44, 0
    s_cselect_b32 s32, s20, s22
    s_cselect_b32 s33, s21, s23
    s_cmp_lt_u32 s7, 14
    s_cselect_b32 s32, s32, s10
    s_cselect_b32 s33, s33, s11
    v_mov_b32 v14, s32
    v_mov_b32 v15, s33
    v_mov_b32 v21, s14
    v_mov_b32 v22, s15
    v_cndmask_b32 v14, v14, v21, vcc
    v_cndmask_b32 v15, v15, v22, vcc
    v_mov_b32 v21, s12
    v_mov_b32 v22, s13
    v_cndmask_b32 v14, v14, v21, s[70:71]
    v_cndmask_b32 v15, v15, v22, s[70:71]
    v_lshl_add_u64 v[14:15], v[16:17], 0, v[14:15]
    v_lshlrev_b32 v16, 2, v13
    v_mul_u32_u24 v18, 52, v13""" % (128*896, WB))
    srd(A, 28, 8, 2048*896)
    def dma(c):
        st=c%3; L=[]
        for p in range(4):
            L.append("s_add_u32 m0, s61, %d\ns_nop 0\nglobal_load_lds_dwordx4 v[14:15], off\nv_lshl_add_u64 v[14:15], v[%d:%d], 0, v[14:15]" % (st*8192+p*1024, 18 if p==3 else 16, 19 if p==3 else 17))
            if p%2==0:
                e=p//2
                L.append("s_add_u32 m0, s60, %d\ns_nop 0\nbuffer_load_dwordx4 v%d, s[28:31], s59 offen lds%s" % (st*16384+e*1024, 8+e, "\ns_add_u32 s59, s59, 128" if e else ""))
        return L
    VL=[]
    def emit(x, tag):
        A(x)
        for l in x.split("\n"):
            if l.strip().startswith(("buffer_","global_")): VL.append(tag)
    def vw(tag): return len(VL)-1-max(i for i,t in enumerate(VL) if t==tag)
    C1=int(os.environ.get("C1","1"))
    for c in range(1 if C1 else 2):
        for x in dma(c): emit(x,c)
    PF=int(os.environ.get("PF","0"))
    pfa="""s_and_b32 s62, s6, 7
        s_mul_i32 s62, s62, 40
        s_mul_i32 s63, s45, 10
        s_add_u32 s62, s62, s63
        s_add_u32 s62, s62, 128
        v_lshrrev_b32 v34, 1, v0
        v_add_u32 v34, s62, v34
        v_mul_lo_u32 v34, v34, s53
        v_and_b32 v35, 1, v0
        v_lshl_add_u32 v34, v35, 7, v34
        v_add_u32 v34, s50, v34
        s_and_b32 s62, s7, 3
        s_lshl_b32 s62, s62, 3
        s_add_u32 s62, s62, s3
        s_mul_i32 s62, s62, 3584
        s_mul_i32 s63, s6, %d
        s_add_u32 s34, s62, s63
        v_mul_u32_u24 v35, 52, v0
        v_lshrrev_b32 v35, 8, v35
        v_lshlrev_b32 v35, 8, v35
        v_lshl_add_u32 v35, v0, 7, v35
        s_cmp_eq_u32 s57, 2
        s_cselect_b32 s35, 0x55555, 0xfffff""" % (128*896)
    pfx="""s_mov_b32 exec_lo, s35
        s_mov_b32 exec_hi, 0
        global_load_dword v62, v34, s[32:33]
        s_mov_b32 exec_lo, 0xfffff
        buffer_load_dword v63, v35, s[28:31], s34 offen offset:256
        s_mov_b64 exec, -1"""
    if PF: A(pfa.replace("s_cselect_b32 s35, 0x55555, 0xfffff","s_mov_b32 s35, 0xfffff\ns_cselect_b32 s35, 0x55555, s35"))
    if PF==1: emit(pfx,"pf")
    stamp(A,1)
    srd(A, 40, 24, WS_SIZE)
    A("""s_lshl_b32 s63, s2, 3
    s_add_u32 s63, s63, s3
    s_mul_i32 s64, s63, 4682
    s_lshr_b32 s64, s64, 16
    s_mul_i32 s65, s64, 14
    s_sub_u32 s65, s63, s65
    s_mul_i32 s54, s64, 1821
    s_lshr_b32 s54, s54, 16
    s_mul_i32 s55, s54, 36
    s_sub_u32 s55, s64, s55
    s_lshr_b32 s69, s65, 1
    s_lshl_b32 s69, s69, 2
    s_add_u32 s69, s69, s54
    s_lshl_b32 s69, s69, 3
    s_add_u32 s69, s69, s55
    s_lshl_b32 s69, s69, 1
    s_lshr_b32 s68, s54, 1
    s_xor_b32 s68, s68, s65
    s_and_b32 s68, s68, 1
    s_xor_b32 s68, s68, 1
    s_add_u32 s69, s69, s68
    s_lshl_b32 s69, s69, 10
    s_add_u32 s69, s69, %d
    s_mul_i32 s66, s54, 28
    s_add_u32 s66, s66, s55
    s_lshl_b32 s66, s66, 4
    s_sub_u32 s56, s55, 28
    s_lshr_b32 s58, s56, 1
    s_lshl_b32 s54, s54, 2
    s_add_u32 s58, s58, s54
    s_mul_i32 s58, s58, 28
    s_and_b32 s56, s56, 1
    s_lshl_b32 s54, s56, 4
    s_add_u32 s58, s58, s54
    s_lshl_b32 s56, s56, 4
    s_sub_u32 s56, 64, s56
    s_cmp_lt_u32 s55, 28
    s_cselect_b32 s36, s18, s16
    s_cselect_b32 s37, s19, s17
    s_mov_b32 s38, %d
    s_cselect_b32 s38, %d, s38
    s_cselect_b32 s66, s66, s58
    s_cselect_b32 s56, 64, s56
    s_and_b32 s37, s37, 0xffff
    s_mov_b32 s39, 0x00020000
    s_mul_i32 s66, s66, 896
    s_lshl_b32 s67, s65, 6
    s_add_u32 s66, s66, s67
    s_mul_i32 s67, s65, 144
    s_add_u32 s67, s67, s64
    s_lshl_b32 s67, s67, 10
    s_add_u32 s67, s67, %d
    s_cmp_lt_u32 s55, 28
    s_cselect_b32 s67, s67, s69
    s_cmp_lt_u32 s63, 2016
    s_cselect_b32 s67, s67, 0x7fff0000
    v_cmp_gt_u32 vcc, s56, v0
    v_lshrrev_b32 v21, 2, v0
    v_mul_u32_u24 v21, 896, v21
    v_lshl_add_u32 v21, v3, 4, v21
    v_mov_b32 v22, 0x7fff0000
    v_cndmask_b32 v21, v22, v21, vcc
    s_lshl_b32 s68, s3, 10
    s_add_u32 s68, s68, %d
    v_lshlrev_b32 v49, 4, v0
    v_mov_b32 v23, v21""" % (WO_OFF-56*1024, 448*896, 1792*896, WF_OFF, TS))
    tj="s_mov_b32 m0, s68\ns_nop 0\nbuffer_load_dwordx4 v23, s[36:39], s66 offen lds"
    if not C1: emit(tj,"T")
    ES=int(os.environ.get("ES","1")); E1=int(os.environ.get("E1","23")); E2=int(os.environ.get("E2","24"))
    A("""s_lshl_b32 s26, s63, 10
    s_add_u32 s26, s26, %d
    v_mov_b32 v248, -1
    v_mov_b32 v249, -1
    v_mov_b32 v250, -1
    v_mov_b32 v251, -1""" % (OF_OFF))
    st1="buffer_store_dwordx4 v[248:251], v49, s[40:43], s26 offen%s" % SC
    st2="buffer_store_dwordx4 v[228:231], v49, s[40:43], s67 offen%s" % SC
    if not ES: emit(st1,"s")
    C3=int(os.environ.get("C3","0"))
    if C3==1:
        for x in dma(2): emit(x,2)
    A("""v_bfe_u32 v20, v0, 1, 3
    v_xor_b32 v20, v20, v5
    v_lshlrev_b32 v20, 4, v20
    v_lshl_add_u32 v20, v6, 7, v20
    s_lshl_b32 s62, s46, 13
    v_add_u32 v20, s62, v20
    v_lshl_add_u32 v21, v5, 3, v2
    v_lshlrev_b32 v21, 8, v21
    v_xor_b32 v22, s47, v2
    v_lshl_add_u32 v21, v22, 6, v21
    v_and_b32 v22, 1, v1
    v_lshlrev_b32 v22, 5, v22
    v_lshl_add_u32 v22, v3, 3, v22
    v_add_u32 v21, v21, v22
    v_lshl_add_u32 v32, v5, 2, v2
    v_lshl_add_u32 v32, v32, 6, v22
    v_add_u32 v48, s68, v32""")
    for i in range(4):
        A("""s_xor_b32 s62, s48, %d
        s_lshl_b32 s69, s62, 5
        v_xor_b32 v%d, s69, v20
        s_mul_i32 s62, s62, 24576
        s_add_u32 s62, s62, %d
        v_add_u32 v%d, s62, v21""" % (i, 24+i, WB, 28+i))
    PK=int(os.environ.get("PK","0"))
    for r in (range(232,240) if PK else range(36,40)): A("v_mov_b32 v%d, 0" % r)
    A("""v_mov_b32 v33, 0x3f803f80
    v_cmp_eq_u32 vcc, 0, v6
    v_cmp_eq_u32 s[70:71], 20, v6
    s_mov_b32 s72, 0xffff0000
    s_mov_b32 s73, 0x07060302
    s_or_b64 vcc, vcc, s[70:71]
    s_mov_b32 s74, 0x%x
    v_cndmask_b32 v168, 0, v33, vcc
    v_mov_b32 v169, v168
    v_mov_b32 v170, v168
    v_mov_b32 v171, v168
    s_lshl_b32 s62, s46, 12
    s_add_u32 s62, s62, 16384
    v_lshlrev_b32 v44, 6, v6
    v_add_u32 v44, s62, v44
    s_lshl_b32 s69, s47, 4
    v_lshl_add_u32 v45, v5, 3, v44
    v_add_u32 v45, s69, v45
    s_lshl_b32 s62, s47, 9
    s_add_u32 s62, s62, 24576
    v_lshlrev_b32 v46, 2, v6
    v_add_u32 v46, s62, v46
    s_lshl_b32 s69, s46, 7
    v_add_u32 v47, s69, v46
    v_cmp_gt_u32 vcc, 32, v0
    s_lshl_b32 s75, s6, 2
    s_lshl_b32 s62, s46, 1
    s_add_u32 s75, s75, s62
    v_mov_b32 v190, 0
    v_mov_b32 v191, 0
    v_mov_b32 v194, 0
    v_mov_b32 v195, 0""" % fbits(1.0/448))
    D2=int(os.environ.get("D2","0"))
    def bb(P): return [128,144,232][P%3] if D2 else 128+16*(P%2)
    def xr(P, tok): return ((172+8*D2*((P//4)%2)) if P%4==0 else bb(P))+4*tok
    def wr(P, hf): return bb(P)+8+4*hf
    def reads(P):
        c,i=divmod(P,4); st=c%3; L=[]
        for hf in range(2):
            for z in range(2):
                L.append("ds_read_b64_tr_b16 v[%d:%d], v%d offset:%d" % (wr(P,hf)+2*z, wr(P,hf)+2*z+1, 28+i, st*8192+hf*4096+z*1024))
            L.append("ds_read_b128 %s, v%d offset:%d" % (r4(xr(P,hf)), 24+i, st*16384+hf*4096))
        return L
    so=[]
    for tok in range(2):
        for r in range(4):
            src=172+4*tok+r; t0=40+2*(r%2); t1=t0+1
            if PK:
                sa=232+4*tok; tt="v[%d:%d]" % (t0,t1)
                so+=["v_and_b32 v%d, s72, v%d" % (t0,src), "v_lshlrev_b32 v%d, 16, v%d" % (t1,src),
                    "v_pk_add_f32 v[%d:%d], v[%d:%d], %s" % (sa,sa+1,sa,sa+1,tt), "v_pk_fma_f32 v[%d:%d], %s, %s, v[%d:%d]" % (sa+2,sa+3,tt,tt,sa+2,sa+3)]
                continue
            so+=["v_and_b32 v%d, s72, v%d" % (t0,src), "v_lshlrev_b32 v%d, 16, v%d" % (t1,src),
                "v_add_f32 v%d, v%d, v%d" % (36+2*tok,36+2*tok,t0), "v_fmac_f32 v%d, v%d, v%d" % (37+2*tok,t0,t0),
                "v_add_f32 v%d, v%d, v%d" % (36+2*tok,36+2*tok,t1), "v_fmac_f32 v%d, v%d, v%d" % (37+2*tok,t1,t1)]
    MS=int(os.environ.get("MS","0"))
    if MS:
        A("v_mov_b32 v34, v33\nv_mov_b32 v35, v33\nv_cmp_eq_u32 s[76:77], 1, v3\nv_cmp_eq_u32 s[78:79], 2, v3\nv_cmp_eq_u32 s[34:35], 3, v3")
        def ms(first):
            L=[]
            for z in range(2):
                for tok in range(2):
                    src="v[%d:%d]" % (172+4*tok+2*z,173+4*tok+2*z)
                    for kind in range(2):
                        acc=r4(232+8*tok+4*kind)
                        L.append("v_mfma_f32_4x4x4_16b_bf16 %s, %s, %s, %s" % (acc, src if kind else "v[34:35]", src, "0" if first and z==0 else acc))
            return L
        msel=[]
        for tok in range(2):
            q=236+8*tok
            msel+=["v_mov_b32 v%d, v%d" % (36+2*tok, 232+8*tok), "v_cndmask_b32 v%d, v%d, v%d, s[76:77]" % (37+2*tok,q,q+1),
                   "v_cndmask_b32 v%d, v%d, v%d, s[78:79]" % (37+2*tok,37+2*tok,q+2), "v_cndmask_b32 v%d, v%d, v%d, s[34:35]" % (37+2*tok,37+2*tok,q+3)]
    fm=[]
    for st in (8,4,2):
        for tok in range(2):
            b=196+16*tok
            for j in range(st): fm.append("v_add_f32 v%d, v%d, v%d" % (b+j,b+j,b+j+st))
    seq="""v_mul_f32 v{s}, s74, v{s}
        v_mul_f32 v{q}, s74, v{q}
        v_fma_f32 v{q}, -v{s}, v{s}, v{q}
        v_max_f32 v{q}, 0, v{q}
        v_cvt_pk_bf16_f32 v{f}, -v{s}, -v{s}
        v_cvt_pk_bf16_f32 v{q}, v{q}, v{q}
        v_and_b32 v{q}, s72, v{q}
        v_add_f32 v{q}, 0x{eps:x}, v{q}
        v_cvt_pk_bf16_f32 v{q}, v{q}, v{q}
        v_and_b32 v{q}, s72, v{q}
        v_sqrt_f32 v{q}, v{q}
        v_mov_b32 v{f1}, v{f}
        v_cvt_pk_bf16_f32 v{q}, v{q}, v{q}
        v_and_b32 v{d}, s72, v{q}
        v_rcp_f32 v{r}, v{d}
        v_mov_b32 v{f2}, v{f}
        v_mov_b32 v{f3}, v{f}"""
    s0,s1=[seq.format(s=196+16*tok,q=197+16*tok,f=180+4*tok,f1=181+4*tok,f2=182+4*tok,f3=183+4*tok,d=54+tok,r=56+tok,eps=fbits(1e-5)).split("\n") for tok in range(2)]
    for a_,b_ in zip(s0,s1): fm+=[a_,b_]
    for hf in range(2):
        fm+="""v_add_f32 v{c}, v{c}, v{c1}
        v_cndmask_b32 v{c}, 0, v{c}, vcc
        v_and_b32 v58, s72, v{c}
        v_sub_f32 v59, v{c}, v58
        v_and_b32 v60, s72, v59
        v_sub_f32 v61, v59, v60
        v_perm_b32 v{f}, v60, v58, s73
        v_lshrrev_b32 v{f1}, 16, v61""".format(c=50+2*hf,c1=51+2*hf,f=188+4*hf,f1=189+4*hf).split("\n")
    if C1 in (1,3):
        for x in dma(1): emit(x,1)
        if C1==1: emit(tj,"T")
    A("s_waitcnt vmcnt(%d)\ns_barrier" % vw(0))
    stamp(A,2)
    for x in reads(0): A(x)
    if C1==2:
        for x in dma(1): emit(x,1)
    if C1>=2: emit(tj,"T")
    if D2:
        for x in reads(1): A(x)
    if PF==2: emit(pfx,"pf")
    pend=[(x,2) for x in dma(2)] if not C3 else []
    if os.environ.get("PR"): A("s_cmp_eq_u32 s44, 0\ns_cbranch_scc1 k1_pr\ns_setprio 1\nk1_pr:")
    for P in range(28):
        c,i=divmod(P,4)
        if os.environ.get("FS"):
            if P in (4,8,12,20): stamp(A,{4:1,8:3,12:4,20:5}[P])
        elif P==12: stamp(A,3)
        rd=reads(P+1+D2) if P+1+D2<28 else []
        va=[]
        if i==3-D2 and c<6:
            assert not pend
            A("s_waitcnt vmcnt(%d) lgkmcnt(0)\ns_barrier" % vw(c+1))
            if c+3<=6: pend=[(x,c+3) for x in dma(c+3)]
        elif P==26:
            A("""s_mov_b32 exec_hi, 0
            ds_write_b32 v47, v160
            ds_write_b32 v47, v164 offset:256
            s_mov_b32 exec_hi, -1
            ds_write_b64 v45, v[36:37]
            ds_write_b64 v45, v[38:39] offset:2048
            s_waitcnt lgkmcnt(0)
            s_barrier""")
            ex=[]
            for tok in range(2):
                for q in range(4): ex.append("ds_read_b128 %s, v44 offset:%d" % (r4(196+16*tok+4*q), tok*2048+q*16))
            ex+=["ds_read2_b32 v[50:51], v46 offset0:0 offset1:32","ds_read2_b32 v[52:53], v46 offset0:64 offset1:96"]
            rd=ex+rd
        else:
            A("s_waitcnt lgkmcnt(%d)" % (6 if D2 and P<27 else 0))
        ns=len(so)
        if c<6:
            if i<3: va=so[ns*i//3//4*4:ns*(i+1)//3//4*4] if PK else so[16*i:16*i+16]
        elif i<2:
            va=so[ns//2*i:ns//2*(i+1)]
            if PK and i==1: va=va+["v_add_f32 v%d, v%d, v%d" % (36+j,232+2*j,233+2*j) for j in range(4)]
        if MS:
            va=[]
            if c<6:
                if MS==1 and i in (2,): va=ms(c==0)[:4]
                if MS==1 and i==1: va=[]
                if MS==1 and i==0: va=[]
            m_=ms(c==0)
            if c<6: va={0:m_[:2],1:m_[2:4],2:m_[4:],3:[]}[i] if MS==1 else {0:m_[:4],1:m_[4:],2:[],3:[]}[i]
            else: va={0:m_,1:[],2:[],3:[]}[i]
            if P==25: va=["s_nop 0"]*3+msel
        if D2 and c%2:
            for r in range(172,180): va=[x.replace("v%d" % r, "v%d" % (r+8)) for x in va]
        if P==9: rd=rd+["ds_read_b64_tr_b16 v[228:229], v48","ds_read_b64_tr_b16 v[230:231], v48 offset:512"]
        if P==27: va=fm
        take=2 if i!=2 else len(pend)
        if D2: take=3 if P<2 else 2
        dm=pend[:take]; pend=pend[take:]
        if ES and P==E1: dm=dm+[(st1,"s")]
        if ES and P==E2: dm=dm+[(st2,"s")]
        if PF==3 and P==2-D2: dm=dm+[(pfx,"pf")]
        mm=[]
        for hf in range(2):
            if i<2:
                mm.append("v_mfma_f32_16x16x32_bf16 %s, v[168:171], %s, %s" % (r4(160+4*hf),r4(wr(P,hf)),r4(160+4*hf) if P else "0"))
            for tok in range(2):
                acc=64+32*hf+16*tok
                mm.append("%s %s, %s, %s, %s" % (MF,r16(acc),r4(wr(P,hf)),r4(xr(P,tok)),r16(acc) if P else "0"))
        if P==25: mm=[mm[0],mm[3],mm[1],mm[2],mm[4],mm[5]]
        X=os.environ.get("X","")
        if "v" in X and P<27: va=[]
        if "c" in X: mm=[m for m in mm if "16x16" not in m]
        if "d" in X: dm=[]
        if "t" in X: rd=[r for r in rd if "tr_b16" not in r]
        if "x" in X: rd=[r for r in rd if "b128" not in r]
        n=len(mm); slots=[[] for _ in range(n)]
        nr=RDS
        for j,x in enumerate(rd): slots[min(n-1,j*nr//len(rd))].append(x)
        DP=int(os.environ.get("DP","2"))
        for j,x in enumerate(dm): slots[n-DP+(j*2)//len(dm)].append(x)
        for j,x in enumerate(va): slots[j*n//len(va)].append(x)
        for j in range(n):
            A(mm[j])
            for x in slots[j]:
                if isinstance(x,tuple): emit(*x)
                else: A(x)
    if not os.environ.get("FS"): stamp(A,4)
    A("s_nop 1" if ES else st2+"\ns_nop 0")
    for tok in range(2):
        for hf in range(2):
            acc=64+32*hf+16*tok
            A("%s %s, %s, %s, %s" % (MF,r16(acc),r4(188+4*hf),r4(180+4*tok),r16(acc)))
    A("s_cmp_ge_u32 s7, 14\ns_cbranch_scc1 k1_qkv")
    if not os.environ.get("FS"): stamp(A,5)
    A("""v_mul_f32 v58, 0x%x, v56
    v_mul_f32 v59, 0x%x, v57
    s_mul_i32 s76, s75, %d
    s_lshl_b32 s62, s7, 2
    s_add_u32 s62, s62, s47
    s_lshl_b32 s62, s62, 11
    s_add_u32 s76, s76, s62
    s_add_u32 s76, s76, %d
    s_add_u32 s77, s76, %d
    s_cmp_eq_u32 s44, 1
    s_nop 3""" % (fbits(-LOG2E), fbits(-LOG2E), 112*1024, HF_OFF, 112*1024))
    for tok in range(2):
        G=64+16*tok; U=96+16*tok
        for half in range(2):
            rs=range(8*half,8*half+8)
            PE=int(os.environ.get("PE","1"))
            p2=lambda r: "v[%d:%d]" % (r,r+1)
            if PE:
                for r in rs[::2]: A("v_pk_mul_f32 %s, %s, v[58:59] op_sel:[0,%d] op_sel_hi:[1,%d]" % (p2(G+r),p2(G+r),tok,tok))
            else:
                for r in rs: A("v_mul_f32 v%d, v%d, v%d" % (G+r,G+r,58+tok))
            for r in rs: A("v_exp_f32 v%d, v%d" % (G+r,G+r))
            if PE:
                for r in rs[::2]: A("v_pk_fma_f32 %s, %s, v[54:55], v[54:55] op_sel:[0,%d,%d] op_sel_hi:[1,%d,%d]" % (p2(G+r),p2(G+r),tok,tok,tok,tok))
            else:
                for r in rs: A("v_fma_f32 v%d, v%d, v%d, v%d" % (G+r,G+r,54+tok,54+tok))
            for r in rs: A("v_rcp_f32 v%d, v%d" % (G+r,G+r))
            if PE:
                for r in rs[::2]: A("v_pk_mul_f32 %s, %s, %s" % (p2(U+r),p2(U+r),p2(G+r)))
            else:
                for r in rs: A("v_mul_f32 v%d, v%d, v%d" % (U+r,U+r,G+r))
            o=128+8*tok+4*half
            for j in range(4): A("v_cvt_pk_bf16_f32 v%d, v%d, v%d" % (o+j,U+8*half+2*j,U+8*half+2*j+1))
            HP=int(os.environ.get("HP","0")); HY=int(os.environ.get("HY","0"))
            stx="buffer_store_dwordx4 %s, v49, s[40:43], s%d offen offset:%d" % (r4(o),76+tok,half*1024)
            if 2*tok+half>=4-HY:
                A("s_cbranch_scc1 k1_y%d\n%s%s\ns_branch k1_z%d\nk1_y%d:\n%s\nk1_z%d:" % (o,stx,SC,o,o,stx,o))
            else: A(stx+(SC if 2*tok+half<4-HP else ""))
    if os.environ.get("QS"): stamp(A,3)
    stamp_out(A,7)
    A("s_endpgm")
    A.label("k1_qkv")
    if not os.environ.get("FS"): stamp(A,5)
    qs=LOG2E*28**-0.5
    A("""s_sub_u32 s76, s7, 14
    s_lshl_b32 s76, s76, 3
    s_add_u32 s76, s76, s47
    s_mov_b32 s77, 0x%x
    s_cmp_ge_u32 s76, 10
    s_cselect_b32 s78, 1.0, s77
    s_cselect_b32 s71, -1, 0
    s_mov_b32 s70, 0
    s_cmp_eq_u32 s76, 10
    s_cselect_b32 s79, 0x3f803f80, 0
    s_cselect_b32 s80, 0x3f80, 0
    s_or_b32 s79, s79, 0x3f80
    v_mov_b32 v40, s79
    v_mov_b32 v41, s80
    v_mul_f32 v58, s77, v56
    v_mul_f32 v59, s77, v57
    v_mul_f32 v60, s78, v56
    v_mul_f32 v61, s78, v57
    s_mul_i32 s62, s46, 49152
    s_add_u32 s62, s62, %d
    v_and_b32 v42, 15, v0
    s_lshl_b32 s69, s47, 2
    v_xor_b32 v42, s69, v42
    v_lshlrev_b32 v42, 4, v42
    v_lshl_add_u32 v42, v5, 3, v42
    v_lshl_add_u32 v42, v6, 9, v42
    v_add_u32 v42, s62, v42""" % (fbits(qs), WB+8192))
    for q in range(1,4): A("v_xor_b32 v%d, %d, v42" % (32+q, 16*q))
    A("v_mov_b32 v32, v42")
    for hf in range(2):
        for tok in range(2):
            a0=64+32*hf+16*tok; o=128+16*hf+8*tok
            for j in range(0,16,2): A("v_pk_mul_f32 v[%d:%d], v[%d:%d], v[%d:%d] op_sel:[0,%d] op_sel_hi:[1,%d]" % (a0+j,a0+j+1,a0+j,a0+j+1,58+2*hf,59+2*hf,tok,tok))
            for j in range(8): A("v_cvt_pk_bf16_f32 v%d, v%d, v%d" % (o+j,a0+2*j,a0+2*j+1))
            if hf: A("v_cndmask_b32 v%d, v%d, v40, s[70:71]\nv_cndmask_b32 v%d, v%d, v41, s[70:71]" % (o+6,o+6,o+7,o+7))
            for q in range(4): A("ds_write_b64 v%d, v[%d:%d] offset:%d" % (32+q,o+2*q,o+2*q+1,tok*24576+hf*256))
    if os.environ.get("QS"): stamp(A,1)
    A("""s_mul_i32 s62, s47, 24576
    s_lshl_b32 s69, s46, 13
    s_add_u32 s62, s62, s69
    s_add_u32 s62, s62, %d
    v_xor_b32 v43, v6, v5
    v_lshlrev_b32 v43, 4, v43
    v_lshl_add_u32 v43, v5, 9, v43
    v_add_u32 v43, s62, v43
    s_lshl_b32 s62, s6, 7
    s_add_u32 s62, s62, s49
    s_mul_i32 s62, s62, 896
    s_sub_u32 s69, s7, 14
    s_lshl_b32 s69, s69, 9
    s_add_u32 s81, s62, s69
    s_cmp_eq_u32 s7, 15
    s_cselect_b32 s69, 24, 32
    v_mul_u32_u24 v44, 896, v5
    v_lshl_add_u32 v44, v6, 4, v44
    v_cmp_gt_u32 vcc, s69, v6
    v_mov_b32 v45, 0x7fff0000
    s_waitcnt lgkmcnt(0)
    s_barrier
    v_cndmask_b32 v44, v45, v44, vcc""" % (WB+8192))
    if os.environ.get("QS"): stamp(A,2)
    KS=os.environ.get("KS","")
    A("s_cmp_eq_u32 s7, 14\ns_cbranch_scc1 k1_fin")
    A("""s_lshl_b32 s77, s6, 2
    s_add_u32 s77, s77, s45
    s_lshl_b32 s77, s77, 12
    s_add_u32 s77, s77, %d
    s_mul_i32 s62, s45, 24576
    s_add_u32 s62, s62, %d
    s_cmp_eq_u32 s44, 1
    s_cbranch_scc1 k1_v
    v_and_b32 v52, 15, v0
    v_xor_b32 v52, v52, v5
    v_xor_b32 v52, 24, v52
    v_lshlrev_b32 v52, 4, v52
    v_lshl_add_u32 v52, v6, 9, v52
    v_add_u32 v52, s62, v52
    v_xor_b32 v53, 32, v52
    ds_read_b128 v[96:99], v52
    ds_read_b128 v[100:103], v53
    s_waitcnt lgkmcnt(0)
    buffer_store_dwordx4 v[96:99], v49, s[40:43], s77 offen%s
    buffer_store_dwordx4 v[100:103], v49, s[40:43], s77 offen offset:1024%s
    s_branch k1_fin""" % (KV_OFF, WB+8192, KS, KS))
    A.label("k1_v")
    A("""v_lshl_add_u32 v52, v5, 2, v2
    v_and_b32 v53, 1, v1
    v_lshlrev_b32 v53, 1, v53
    v_bfe_u32 v55, v0, 1, 1
    v_add3_u32 v53, v53, v55, 28
    v_xor_b32 v53, v53, v52
    v_lshlrev_b32 v53, 4, v53
    v_lshl_add_u32 v53, v52, 9, v53
    v_and_b32 v55, 1, v0
    v_lshl_add_u32 v53, v55, 3, v53
    v_add_u32 v52, s62, v53
    v_xor_b32 v53, 128, v52
    ds_read_b64_tr_b16 v[96:97], v52
    ds_read_b64_tr_b16 v[98:99], v53 offset:4096
    ds_read_b64_tr_b16 v[100:101], v52 offset:8192
    ds_read_b64_tr_b16 v[102:103], v53 offset:12288
    s_waitcnt lgkmcnt(0)
    buffer_store_dwordx4 v[96:99], v49, s[40:43], s77 offen offset:2048%s
    buffer_store_dwordx4 v[100:103], v49, s[40:43], s77 offen offset:3072%s""" % (KS, KS))
    A.label("k1_fin")
    for i in range(8):
        A("v_xor_b32 v45, %d, v43\nds_read_b128 %s, v45 offset:%d" % (32*i, r4(64+4*i), i*1024))
    for i in range(8):
        A("s_waitcnt lgkmcnt(%d)\nbuffer_store_dwordx4 %s, v44, s[40:43], s81 offen%s\ns_add_u32 s81, s81, 1792" % (7-i, r4(64+4*i), SC if i<int(os.environ.get("QP","0")) else ""))
    if os.environ.get("QS"): stamp(A,3)
    stamp_out(A,7)
    A.label("k1_done")
    A("s_endpgm")
    return kernel_desc(name, 252, 102)
```

```python
from asmlib import *
from k1 import *
import sys
K2_LDS=102656
K2_BLOCK=256
EX2=49152; FL=98304; MX=98560
def a4(i): return "a[%d:%d]" % (i,i+3)
def a16(i): return "a[%d:%d]" % (i,i+15)
OOB=0x7fff0000
OSC=os.environ.get("OSC","")
QM=int(os.environ.get("QM","1")); LP=int(os.environ.get("LP","0")); GS=int(os.environ.get("GS","28"))
class VM:
    def __init__(s): s.log=[]
    def issue(s, tag): s.log.append(tag)
    def need(s, tags):
        idx=max(i for i,t in enumerate(s.log) if t in tags and all(tt not in tags or True for tt in []) )
        return len(s.log)-1-idx
def gen_k2(A, name="k2_kernel"):
    kernel_head(A, name)
    A("s_cmp_ge_u32 s2, 256\ns_cbranch_scc1 k2_done")
    stamp(A,0); stamp_rt(A,7)
    A("""s_load_dwordx2 s[24:25], s[0:1], 88
    s_load_dwordx2 s[8:9], s[0:1], 0
    s_load_dwordx2 s[10:11], s[0:1], 72
    v_readfirstlane_b32 s3, v0
    v_and_b32 v0, 63, v0
    v_lshlrev_b32 v2, 4, v0
    v_lshrrev_b32 v5, 5, v0
    v_and_b32 v6, 31, v0
    s_lshr_b32 s3, s3, 6
    s_and_b32 s4, s2, 7
    s_lshl_b32 s4, s4, 2
    s_bfe_u32 s5, s2, 0x20003
    s_add_u32 s4, s4, s5
    s_lshr_b32 s5, s2, 5
    s_xor_b32 s6, s3, 3
    s_mov_b32 s72, 0xffff0000
    s_mov_b32 s73, 0x07060302
    s_mov_b32 s60, 0
    s_lshl_b32 s7, s4, 3
    s_add_u32 s7, s7, s5
    s_mul_i32 s12, s7, 7168
    %s
    v_mul_u32_u24 v3, 896, v1
    v_mad_u32_u24 v3, v4, 56, v3
    v_lshl_add_u32 v3, v5, 4, v3
    s_lshl_b32 s46, s3, 16
    s_add_u32 s46, s46, %d
    s_mov_b32 s47, %d""" % ("v_lshrrev_b32 v1, 2, v6\nv_and_b32 v4, 3, v0" if QM else "v_and_b32 v1, 7, v0\nv_lshrrev_b32 v4, 3, v6", KV_OFF, KV_OFF))
    for g in range(4): A("s_xor_b32 s%d, s6, %d\ns_mul_i32 s%d, s%d, 224\ns_add_u32 s%d, s%d, s12" % (52+g,g,52+g,52+g,52+g,52+g))
    A("s_waitcnt lgkmcnt(0)")
    srd(A, 40, 24, WS_SIZE)
    Q=lambda g,s: 16+8*g+4*s
    O=lambda g: 48+16*g
    S=lambda b: 112+16*b
    P=lambda b: 144+8*b
    KV=lambda st,j: 160+16*st+4*j
    F=lambda st,j: 64+16*st+4*j
    T=lambda g: [112,128,224,O(0)][g]
    vm=VM()
    A("buffer_load_dwordx4 %s, v2, s[40:43], s47 offen\nbuffer_load_dwordx4 %s, v2, s[40:43], s47 offen offset:1024" % (r4(KV(3,0)), r4(KV(3,1))))
    for g in range(4):
        for s_ in range(2):
            A("buffer_load_dwordx4 %s, v3, s[40:43], s%d offen offset:%d" % (r4(Q(g,s_)), 52+g, s_*32))
    VO=[2,248,249,250]
    def kvload(st,pro=False): return [("buffer_load_dwordx4 %s, v%d, s[40:43], s%d offen offset:%d" % (r4(KV(st,j)), VO[st], 48 if (st==3 or pro) else 51, j*1024), ("kv",st,j)) for j in range(4)]
    def gload(st): return [("buffer_load_dwordx4 %s, v%d, s[40:43], s%d offen offset:%d" % (a4(F(st,j)), VO[st//4], 68+j, (st%4)*1024), ("g",st,j)) for j in range(4)]
    def em(L):
        for x,t in L: A(x); vm.issue(t)
    for k in range(1,4): A("v_add_u32 v%d, %d, v2" % (VO[k], 4096*k))
    A.label("k2_restart")
    A("s_mov_b32 s48, s46\ns_add_u32 s51, s46, 16384")
    LK=int(os.environ.get("LK","1"))
    em(kvload(0,1))
    if not LK: em(kvload(1,1)); em(kvload(2,1))
    A("""s_and_b32 s13, s6, 1
    s_lshr_b32 s14, s6, 1
    s_lshl_b32 s15, s4, 1
    s_add_u32 s16, s15, s13
    s_xor_b32 s17, s16, 1
    s_mul_i32 s18, s3, %d
    s_add_u32 s18, s18, %d
    s_mul_i32 s64, s16, %d
    s_add_u32 s64, s64, s18
    s_mul_i32 s65, s17, %d
    s_add_u32 s65, s65, s18
    s_lshl_b32 s15, s5, 1
    s_add_u32 s19, s15, s14
    s_xor_b32 s20, s19, 1
    s_mul_i32 s18, s3, %d
    s_add_u32 s18, s18, %d
    s_mul_i32 s66, s19, %d
    s_add_u32 s66, s66, s18
    s_mul_i32 s67, s20, %d
    s_add_u32 s67, s67, s18
    s_cmp_lt_u32 s5, 7
    s_cselect_b32 s64, s64, 0x%x
    s_cselect_b32 s65, s65, 0x%x
    s_cselect_b32 s66, s66, 0x%x
    s_cselect_b32 s67, s67, 0x%x
    s_lshl_b32 s21, s5, 2
    s_add_u32 s21, s21, s3
    s_lshl_b32 s21, s21, 14
    s_add_u32 s21, s21, %d
    s_mul_i32 s61, s17, %d
    s_lshl_b32 s62, s20, 6
    s_add_u32 s74, s61, s62
    v_mul_u32_u24 v7, 896, v6
    v_lshl_add_u32 v7, v5, 4, v7""" % (28*1024, HF_OFF, 112*1024, 112*1024, 36*1024, WF_OFF, 144*1024, 144*1024, OOB,OOB,OOB,OOB, WO_OFF, 32*896))
    for j in range(4): A("s_add_u32 s%d, s%d, 16384\ns_add_u32 s%d, s46, %d" % (68+j,64+j,56+j,16384*j))
    for tau in range(3): A("s_xor_b32 s61, s6, %d\ns_mul_i32 s61, s61, 12288\ns_add_u32 s61, s61, %d\nv_add_u32 v%d, s61, v2" % (tau, tau*4096, 251+tau))
    A("""s_mul_i32 s61, s3, 12288
    v_add_u32 v254, s61, v2
    s_mov_b32 s22, 0x5e800000
    s_lshl_b32 s61, s3, 2
    s_add_u32 s61, s61, %d
    v_mov_b32 v3, s61
    s_and_b32 s61, s7, 3
    s_lshl_b32 s61, s61, 3
    v_add_u32 v255, s61, v1
    v_lshl_add_u32 v255, v5, 5, v255
    v_lshlrev_b32 v255, 4, v255
    v_lshl_add_u32 v255, v4, 11, v255
    s_lshr_b32 s75, s7, 2
    s_lshl_b32 s75, s75, 15
    s_lshl_b32 s61, s3, 13
    s_add_u32 s61, s61, %d
    s_add_u32 s75, s75, s61
    s_lshl_b32 s76, s16, 15
    s_add_u32 s76, s76, s61
    s_lshl_b32 s77, s17, 15
    s_add_u32 s77, s77, s61
    s_mov_b32 s23, -2
    s_mov_b32 s80, 0""" % (FL, OF_OFF))
    srd(A, 28, 8, 2048*896)
    srd(A, 32, 10, 2048*896)
    def zero_mslots():
        A("s_mov_b32 exec_lo, 0")
        for g in range(4): A("v_mov_b32 v%d, 0\nv_mov_b32 v%d, 0" % (Q(g,1)+2, Q(g,1)+3))
        A("s_mov_b32 exec_lo, -1")
    M_=lambda g: 8+g
    def patch_all(off):
        t=lambda g,k: P(0)+2*g+k
        for g in range(4): A("v_sub_f32 v%d, %s, v%d" % (M_(g), off, M_(g)))
        for g in range(4): A("v_and_b32 v%d, s72, v%d" % (t(g,0), M_(g)))
        for g in range(4): A("v_sub_f32 v%d, v%d, v%d" % (M_(g), M_(g), t(g,0)))
        for g in range(4): A("v_and_b32 v%d, s72, v%d" % (t(g,1), M_(g)))
        for g in range(4): A("v_sub_f32 v%d, v%d, v%d" % (M_(g), M_(g), t(g,1)))
        A("s_mov_b32 exec_lo, 0")
        for g in range(4): A("v_perm_b32 v%d, v%d, v%d, s73\nv_lshrrev_b32 v%d, 16, v%d" % (Q(g,1)+2, t(g,1), t(g,0), Q(g,1)+3, M_(g)))
        A("s_mov_b32 exec_lo, -1")
    def max16(dst, b, first):
        if first: A("v_max_f32 v%d, v%d, v%d" % (dst, b, b+1))
        else: A("v_max3_f32 v%d, v%d, v%d, v%d" % (dst, dst, b, b+1))
        for j in range(2,16,2): A("v_max3_f32 v%d, v%d, v%d, v%d" % (dst, dst, b+j, b+j+1))
    def xhalf_all():
        for g in range(4): A("v_mov_b32 v%d, v%d" % (12+g, M_(g)))
        A("s_nop 0")
        for g in range(4): A("v_permlane32_swap_b32 v%d, v%d" % (M_(g), 12+g))
        for g in range(4): A("v_max_f32 v%d, v%d, v%d" % (M_(g), M_(g), 12+g))
    def qk_all():
        for g in range(4):
            A("%s %s, %s, %s, 0" % (MF, r16(T(g)), r4(KV(3,0)), r4(Q(g,0))))
            A("%s %s, %s, %s, %s" % (MF, r16(T(g)), r4(KV(3,1)), r4(Q(g,1)), r16(T(g))))
    if LK:
        A("s_waitcnt vmcnt(4)")
        em(kvload(1,1)); em(kvload(2,1))
    A("s_cmp_lg_u32 s60, 0\ns_cbranch_scc1 k2_skipm0")
    A("s_waitcnt vmcnt(12)")
    zero_mslots()
    A("s_nop 0")
    qk_all()
    A("s_nop 5")
    for g in range(4): max16(M_(g), T(g), True)
    xhalf_all(); patch_all("0xc2800000")
    A.label("k2_skipm0")
    A("s_waitcnt vmcnt(10)")
    A("%s %s, %s, %s, 0" % (MF, r16(S(0)), r4(KV(0,0)), r4(Q(0,0))))
    A("%s %s, %s, %s, %s" % (MF, r16(S(0)), r4(KV(0,1)), r4(Q(0,1)), r16(S(0))))
    E=lambda k,d: int(os.environ.get(k,str(d)))
    NL=E("NL",14); T1=E("T1",4); T2=E("T2",6); T3=E("T3",6); GS=E("GS",32); MAXL=E("MAXL",3); WFL=E("WFL",20)
    NST=12
    def FR(st,j): return a4(64+16*st+4*j) if st<7 else (a4(192+16*(st-7)+4*j) if st<11 else r4(224+4*j))
    def gld(n): return [("buffer_load_dwordx4 %s, v%d, s[40:43], s%d offen offset:%d" % (FR(n%NST,j), VO[(n%16)//4], (64 if n<16 else 68)+j, (n%4)*1024), ("g",n,j)) for j in range(4)]
    def kvl(t): return [("buffer_load_dwordx4 %s, v%d, s[40:43], s%d offen offset:%d" % (r4(KV(t%4,j)), VO[t%4], 56+t//4 if t<16 else 21, j*1024), ("kv",t,j)) for j in range(4)]
    wl=[("buffer_load_dwordx4 %s, v250, s[40:43], s21 offen offset:%d" % (a4(176+4*j), j*1024), ("x",j)) for j in range(4)]
    xl=[("buffer_load_dwordx4 %s, v7, s[28:31], s74 offen offset:%d" % (r4(240+4*j), j*32), ("x",4+j)) for j in range(2)]
    items=[]; gi=0; pk=[]; pg=[]; pd=[]
    for n in range(NST): pg+=gld(n)
    def G():
        nonlocal gi, pg
        if gi>=112: return
        n,tau=divmod(gi,4); ct,tok=divmod(tau,2); gi+=1
        items.append(("m","%s %s, %s, %s, %s" % (MF, a16(16*tau), FR(n%NST,2+ct), FR(n%NST,tok), a16(16*tau) if n else "0"), [("g",n,2+ct),("g",n,tok)]))
        if tau==3 and n+NST<28: pg=pg+gld(n+NST)
    def ld():
        q=pk if pk else pg
        if q: y=q.pop(0); items.append(("l",y[0],y[1])); return 1
        return 0
    owr=lambda g: ["ds_write_b128 v%d, %s offset:%d" % (251+g, r4(O(g)+4*q), q*1024) for q in range(4)]
    U0=E("U0",14)
    for u in range(64):
        t,g=divmod(u,4); tn,gn=divmod(u+1,4); tp_,gp=divmod(u-1,4)
        b=u%2; s0=S(b); s1=S(1-b)
        MS=[("%s %s, %s, %s, 0" % (MF, r16(s1), r4(KV(tn%4,0)), r4(Q(gn,0))), [("kv",tn,0)]),
           ("%s %s, %s, %s, %s" % (MF, r16(s1), r4(KV(tn%4,1)), r4(Q(gn,1)), r16(s1)), [("kv",tn,1)])] if u<63 else []
        MP=[("%s %s, %s, %s, %s" % (MF, r16(O(gp)), r4(KV(tp_%4,2)), r4(P(1-b)), r16(O(gp)) if tp_ else "0"), [("kv",tp_,2)]),
           ("%s %s, %s, %s, %s" % (MF, r16(O(gp)), r4(KV(tp_%4,3)), r4(P(1-b)+4), r16(O(gp))), [("kv",tp_,3)])] if u else []
        tgt=0 if u<U0 else (4*NL*(u-U0+1)+(63-U0))//(64-U0)
        ng=tgt-gi
        order={0:MS+MP, 1:MS+["G"]+MP, 2:MS[:1]+["G"]+MS[1:]+MP[:1]+["G"]+MP[1:]}[ng]
        e=lambda j: ("v_exp_f32 v%d, v%d" % (s0+j,s0+j),8)
        c=lambda j: ("v_cvt_pk_bf16_f32 v%d, v%d, v%d" % (P(b)+j,s0+2*j,s0+2*j+1),4)
        va=[e(0),e(1)]
        for j in range(6): va+=[e(2*j+2),c(j),e(2*j+3)]
        va+=[e(14),e(15),c(6),c(7)]
        if g==1 and t+3<19: pk+=kvl(t+3)
        if u==E("WU",54): pk+=wl
        if u==E("XU",42): pk+=xl
        if u==62: pd+=[None,None]+owr(0)
        if u==63: pd+=owr(1)
        n=len(order); acc=0; k=0; nl=0
        for i,m in enumerate(order):
            if m=="G": G()
            else: items.append(("m",m[0],m[1]))
            if nl<MAXL or pk: nl+=ld()
            while k<len(va) and (acc+va[k][1]/2<=160*(i+1)/n or i==n-1):
                items.append(("v",va[k][0],None)); acc+=va[k][1]; k+=1
                if pd and k%3==0:
                    y=pd.pop(0)
                    if y: items.append(("v",y,None))
    def I(x):
        for l in x.split("\n"):
            l=l.strip()
            if l=="G": G(); ld()
            elif l.startswith("buffer_"): items.append(("l",l,("o",len(items))))
            else: items.append(("v",l,None))
    items.append(("s",2,None))
    items.append(("m","%s %s, %s, %s, %s" % (MF, r16(O(3)), r4(KV(3,2)), r4(P(1)), r16(O(3))),[]))
    for y in pd+owr(2)[:2]: I(y)
    items.append(("m","%s %s, %s, %s, %s" % (MF, r16(O(3)), r4(KV(3,3)), r4(P(1)+4), r16(O(3))),[]))
    WO=lambda k,ct: r4(160+8*k+4*ct) if k<6 else a4(176+8*(k-6)+4*ct)
    for y in owr(2)[2:]+["G","G"]: I(y)
    I("""v_add_f32 v8, v%d, v%d
    v_add_f32 v9, v%d, v%d
    v_add_f32 v8, v8, v9
    v_cmp_nge_f32 vcc, s22, v8
    v_mov_b32 v10, %d
    s_nop 0
    v_mov_b32 v8, vcc_hi
    ds_write_b32 v3, v8""" % (O(0)+12,O(1)+12,O(2)+12,O(3)+12,FL))
    for q in range(2,T1): I("G")
    I("""s_waitcnt lgkmcnt(0)
    s_barrier
    ds_read_b128 v[12:15], v10""")
    for g in range(3):
        for q in range(4): I("ds_read_b128 %s, v254 offset:%d" % (r4(O(g)+4*q), g*4096+q*1024)+("\nG" if q%2 and 2*g+q//2<T2 else ""))
    for q in range(6,T2): I("G")
    I("""s_waitcnt lgkmcnt(12)
    v_or_b32 v12, v12, v13
    v_or3_b32 v12, v12, v14, v15
    s_nop 0
    v_readfirstlane_b32 s63, v12
    s_nop 0
    s_cmp_lg_u32 s63, 0
    s_cselect_b32 s63, 1, 0
    s_cmp_gt_u32 s63, s60
    s_cbranch_scc1 k2_fb""")
    o3=O(3); L=[]
    for g in range(3):
        L.append("s_waitcnt lgkmcnt(%d)" % (8-4*g))
        for j in ([12]+[j for j in range(16) if j!=12]): L.append("v_add_f32 v%d, v%d, v%d" % (o3+j,o3+j,O(g)+j))
    L.append("v_mov_b32 v9, v%d\nv_mov_b32 v10, v%d\ns_nop 1\nv_permlane32_swap_b32 v9, v10\ns_nop 0\nv_rcp_f32 v10, v10\ns_nop 0" % (o3+12,o3+12))
    for j in range(16): L.append("v_mul_f32 v%d, v%d, v10" % (o3+j,o3+j))
    for j in range(8): L.append("v_cvt_pk_bf16_f32 v%d, v%d, v%d" % (48+j,o3+2*j,o3+2*j+1))
    for j in (0,3,4,7): L.append("v_min_u32 v%d, s23, v%d" % (48+j,48+j))
    for j,x in enumerate(L): I(("G\n" if T3 and j%T3==1 else "")+x)
    I("buffer_store_dwordx4 v[48:51], v255, s[40:43], s75 offen sc1\nbuffer_store_dwordx4 v[52:55], v255, s[40:43], s75 offen offset:1024 sc1".replace(" sc1","" if os.environ.get("LOC") else " sc1"))
    I("s_cmp_ge_u32 s5, 7\ns_cbranch_scc1 k2_fin")
    items.append(("s",3,None))
    OFR=lambda k,tok: (112+8*k if k<6 else 208+8*(k-6))+4*tok
    print("G done at publish", gi, "pending loads", len(pg), file=sys.stderr)
    if E("XU",42)>63: pg+=xl
    for q in range(GS): I("G")
    assert not pg and gi>=4*(28-NST)
    for k in range(8):
        for tok in range(2): I("G\n"*E("OI",0)+"buffer_load_dwordx4 %s, v%d, s[40:43], s%d offen offset:%d%s" % (r4(OFR(k,tok)), VO[k//4], 76+tok, (k%4)*1024, os.environ.get("PL"," sc1")))
    while gi<112: I("G")
    log=[("kv",t,j) for t in range(3) for j in range(4)]
    waits={}
    for n,(k,x,t) in enumerate(items):
        if k=="l": log.append(t)
        elif k=="m" and t: waits[n]=min(len(log)-1-log.index(z) for z in t)
    stamp(A,1)
    cur=10
    for n,(k,x,t) in enumerate(items):
        if k=="s": stamp(A,x); continue
        if k=="m" and n in waits and waits[n]<cur:
            w_=waits[n]; nl=0
            for n2 in range(n+1,len(items)):
                if items[n2][0]=="l": nl+=1
                if n2 in waits and waits[n2]-nl<w_:
                    if waits[n2]-nl<WFL: break
                    w_=waits[n2]-nl
            w_=min(w_,63)
            A("s_waitcnt vmcnt(%d)" % w_); cur=w_
        if k=="l": cur+=1
        A(x)
    A("s_nop 15\ns_branch k2_poll2")
    A.label("k2_poll")
    for k in range(8):
        for tok in range(2): A("buffer_load_dwordx4 %s, v%d, s[40:43], s%d offen offset:%d sc1" % (r4(OFR(k,tok)), VO[k//4], 76+tok, (k%4)*1024))
    A.label("k2_poll2")
    A("v_mov_b32 v9, 0")
    for k in range(8):
        A("s_waitcnt vmcnt(%d)" % (14-2*k))
        for tau in range(4):
            ct,tok=divmod(tau,2)
            A("%s %s, %s, %s, %s" % (MF, a16(192+16*tau), WO(k,ct), r4(OFR(k,tok)), a16(192+16*tau) if k else a16(16*tau)))
            if tau<2: A("v_max3_u32 v9, v9, v%d, v%d" % (OFR(k,tau), OFR(k,tau)+3))
    A("""v_cmp_eq_u32 vcc, -1, v9
    s_add_u32 s80, s80, 1
    s_cmp_gt_u32 s80, 0x40000
    s_cbranch_scc1 k2_go
    s_nop 1
    s_cbranch_vccnz k2_poll""")
    A.label("k2_go")
    if not os.environ.get("IT"): stamp(A,4)
    if os.environ.get("TLP")=="3": stamp_rt(A,7)
    A("s_nop 7")
    for tau in range(3):
        for q in range(4): A("ds_write_b128 v%d, %s offset:%d" % (251+tau, a4(192+16*tau+4*q), EX2+q*1024))
    for j in range(16): A("v_accvgpr_read_b32 v%d, a%d" % (o3+j, 240+j))
    for j in range(8): A("v_lshlrev_b32 v%d, 16, v%d\nv_and_b32 v%d, s72, v%d" % (224+2*j,240+j,225+2*j,240+j))
    A("s_waitcnt lgkmcnt(0)\ns_barrier")
    for g in range(3):
        for q in range(4): A("ds_read_b128 %s, v254 offset:%d" % (r4(O(g)+4*q), EX2+g*4096+q*1024))
    for g in range(3):
        A("s_waitcnt lgkmcnt(%d)" % (8-4*g))
        for j in range(16): A("v_add_f32 v%d, v%d, v%d" % (o3+j,o3+j,O(g)+j))
    A("s_nop 0")
    for sp in range(2):
        for i in range(4): A("v_permlane32_swap_b32 v%d, v%d" % (o3+8*sp+i, o3+8*sp+4+i))
    for j in range(16): A("v_add_f32 v%d, v%d, v%d" % (o3+j,o3+j,224+j))
    for j in range(8): A("v_cvt_pk_bf16_f32 v%d, v%d, v%d" % (48+j,o3+2*j,o3+2*j+1))
    if not os.environ.get("IT"): stamp(A,5)
    A("buffer_store_dwordx4 v[48:51], v7, s[32:35], s74 offen%s\nbuffer_store_dwordx4 v[52:55], v7, s[32:35], s74 offen offset:32%s" % (OSC,OSC))
    A.label("k2_fin")
    stamp_out(A,7,kidx=1)
    A.label("k2_done")
    A("s_endpgm")
    A.label("k2_fb")
    A("s_mov_b32 s60, 1\ns_waitcnt vmcnt(0) lgkmcnt(0)")
    zero_mslots()
    A("s_mov_b32 s48, s46\ns_mov_b32 s49, 0")
    for g in range(4): A("v_mov_b32 v%d, 0xff800000" % M_(g))
    A.label("k2_fb_loop")
    A("buffer_load_dwordx4 %s, v2, s[40:43], s48 offen\nbuffer_load_dwordx4 %s, v2, s[40:43], s48 offen offset:1024\ns_add_u32 s48, s48, 4096\ns_waitcnt vmcnt(0)" % (r4(KV(3,0)), r4(KV(3,1))))
    qk_all()
    A("s_nop 5")
    for g in range(4): max16(M_(g), T(g), False)
    A("s_add_u32 s49, s49, 1\ns_cmp_lt_u32 s49, 16\ns_cbranch_scc1 k2_fb_loop")
    xhalf_all()
    A("v_lshlrev_b32 v251, 2, v0\ns_lshl_b32 s62, s3, 10")
    for g in range(4):
        A("s_xor_b32 s61, s6, %d\ns_lshl_b32 s61, s61, 8\ns_add_u32 s61, s61, %d\nv_add_u32 v%d, s61, v251\nv_add_u32 v252, s62, v%d\nds_write_b32 v252, v%d" % (g, MX, 12+g, 12+g, M_(g)))
    A("s_waitcnt lgkmcnt(0)\ns_barrier")
    for g in range(4):
        for w in range(4): A("ds_read_b32 v%d, v%d offset:%d" % (112+4*g+w, 12+g, w*1024))
        A("s_waitcnt lgkmcnt(0)")
        A("v_max3_f32 v%d, v%d, v%d, v%d\nv_max_f32 v%d, v%d, v%d" % (M_(g),112+4*g,113+4*g,114+4*g,M_(g),M_(g),115+4*g))
    patch_all("0")
    A("s_branch k2_restart")
    return kernel_desc(name, 512, 102, 256)
```

```python
from asmlib import *
QS_OFF=0; KV_OFF=0x200000; WF_OFF=0x240000; OF_OFF=0x440000; WO_OFF=0x640000; HF_OFF=int(__import__("os").environ.get("HFO","0xA00000"),0); WS_SIZE=0x1100000
LOG2E=1.4426950408889634
import struct, os
def fbits(x): return struct.unpack("<I", struct.pack("<f", x))[0]
K1_LDS=155648
RDS=int(os.environ.get("RDS","1"))
SC=os.environ.get("SC"," sc1")
MF="v_mfma_f32_32x32x16_bf16"
def r4(i): return "v[%d:%d]" % (i,i+3)
def r16(i): return "v[%d:%d]" % (i,i+15)
def interleave(main, fill):
    out=[]; n=len(main); k=0
    for i,m in enumerate(main):
        out.append(m)
        tgt=(len(fill)*(i+1)+n-1)//n
        while k<tgt: out.append(fill[k]); k+=1
    return out
def merge(a, b):
    out=[]; i=j=0
    while i<len(a) or j<len(b):
        if j>=len(b) or (i<len(a) and i*len(b)<=j*len(a)): out.append(a[i]); i+=1
        else: out.append(b[j]); j+=1
    return out
def gen_k1(A, name="k1_kernel", sentinel=False):
    WB=49152; TS=147456
    kernel_head(A, name)
    A("s_cmp_ge_u32 s2, 256\ns_cbranch_scc1 k1_done")
    stamp(A,0); stamp_rt(A,7)
    A("""s_load_dwordx8 s[8:15], s[0:1], 0
    s_load_dwordx4 s[20:23], s[0:1], 48
    s_load_dwordx2 s[16:17], s[0:1], 32
    s_load_dwordx2 s[18:19], s[0:1], 64
    s_load_dwordx2 s[24:25], s[0:1], 88
    v_readfirstlane_b32 s3, v0
    v_and_b32 v0, 63, v0
    s_and_b32 s4, s2, 7
    s_lshr_b32 s5, s2, 3
    s_lshr_b32 s3, s3, 6
    s_and_b32 s6, s4, 1
    s_lshl_b32 s6, s6, 3
    s_and_b32 s7, s5, 7
    s_add_u32 s6, s6, s7
%s
    s_lshr_b32 s44, s3, 2
    s_and_b32 s45, s3, 3
    s_and_b32 s46, s3, 1
    s_lshr_b32 s47, s3, 1
    s_lshl_b32 s48, s46, 1
    s_xor_b32 s48, s47, s48
    v_lshrrev_b32 v1, 4, v0
    v_bfe_u32 v2, v0, 2, 2
    v_and_b32 v3, 3, v0
    v_xor_b32 v4, v2, v1
    v_lshrrev_b32 v5, 5, v0
    v_and_b32 v6, 31, v0
    s_lshl_b32 s49, s3, 4
    v_lshrrev_b32 v7, 3, v0
    v_add_u32 v7, s49, v7
    v_mul_u32_u24 v8, 896, v7
    v_and_b32 v10, 7, v0
    v_xor_b32 v11, v10, v1
    v_lshl_add_u32 v8, v11, 4, v8
    v_xor_b32 v9, 64, v8
    v_add_u32 v9, 7168, v9""" % ("""s_lshr_b32 s7, s4, 1
    s_lshl_b32 s7, s7, 2
    s_lshr_b32 s5, s5, 3
    s_add_u32 s7, s7, s5""" if os.environ.get("SP","1")=="0" else """s_lshr_b32 s44, s4, 2
    s_bfe_u32 s45, s4, 0x10001
    s_mul_i32 s46, s44, 7
    s_lshl_b32 s47, s45, 2
    s_add_u32 s47, s47, s46
    s_add_u32 s46, s46, 3
    s_add_u32 s44, s44, 14
    s_lshr_b32 s7, s7, 2
    s_cmp_eq_u32 s7, s45
    s_cselect_b32 s46, s46, s44
    s_lshr_b32 s5, s5, 3
    s_add_u32 s47, s47, s5
    s_sub_u32 s47, s47, 1
    s_cmp_eq_u32 s5, 0
    s_cselect_b32 s7, s46, s47"""))
    A("""s_lshl_b32 s50, s7, 8
    s_sub_u32 s51, s7, 14
    s_lshl_b32 s51, s51, 9
    s_lshl_b32 s52, s44, 8
    s_add_u32 s51, s51, s52
    s_cmp_lt_u32 s7, 14
    s_movk_i32 s53, 896
    s_cselect_b32 s53, 3584, s53
    s_cselect_b32 s50, s50, s51
    s_lshl_b32 s57, s7, 1
    s_add_u32 s57, s57, s44
    s_cmp_eq_u32 s57, 31
    s_cselect_b32 s57, 2, 100
    v_mov_b32 v13, s53
    v_lshlrev_b32 v20, 6, v4
    v_add_u32 v20, s50, v20
    v_cmp_le_u32 vcc, s57, v4
    v_mov_b32 v17, 0
    v_mov_b32 v19, 0
    v_mov_b32 v21, 56
    v_cndmask_b32 v13, v13, v21, vcc
    v_cndmask_b32 v20, v20, v17, vcc
    s_lshl_b32 s58, s45, 4
    v_add_u32 v21, s58, v1
    v_mul_lo_u32 v21, v21, v13
    v_add_u32 v20, v20, v21
    v_lshl_add_u32 v16, v3, 4, v20
    v_cmp_eq_u32 s[70:71], s57, v4
    s_mul_i32 s59, s6, %d
    s_lshl_b32 s60, s3, 11
    s_mul_i32 s61, s45, 24576
    s_lshl_b32 s62, s44, 12
    s_add_u32 s61, s61, s62
    s_add_u32 s61, s61, %d
    s_waitcnt lgkmcnt(0)
    s_cmp_eq_u32 s44, 0
    s_cselect_b32 s32, s20, s22
    s_cselect_b32 s33, s21, s23
    s_cmp_lt_u32 s7, 14
    s_cselect_b32 s32, s32, s10
    s_cselect_b32 s33, s33, s11
    v_mov_b32 v14, s32
    v_mov_b32 v15, s33
    v_mov_b32 v21, s14
    v_mov_b32 v22, s15
    v_cndmask_b32 v14, v14, v21, vcc
    v_cndmask_b32 v15, v15, v22, vcc
    v_mov_b32 v21, s12
    v_mov_b32 v22, s13
    v_cndmask_b32 v14, v14, v21, s[70:71]
    v_cndmask_b32 v15, v15, v22, s[70:71]
    v_lshl_add_u64 v[14:15], v[16:17], 0, v[14:15]
    v_lshlrev_b32 v16, 2, v13
    v_mul_u32_u24 v18, 52, v13""" % (128*896, WB))
    srd(A, 28, 8, 2048*896)
    def dma(c):
        st=c%3; L=[]
        for p in range(4):
            L.append("s_add_u32 m0, s61, %d\ns_nop 0\nglobal_load_lds_dwordx4 v[14:15], off\nv_lshl_add_u64 v[14:15], v[%d:%d], 0, v[14:15]" % (st*8192+p*1024, 18 if p==3 else 16, 19 if p==3 else 17))
            if p%2==0:
                e=p//2
                L.append("s_add_u32 m0, s60, %d\ns_nop 0\nbuffer_load_dwordx4 v%d, s[28:31], s59 offen lds%s" % (st*16384+e*1024, 8+e, "\ns_add_u32 s59, s59, 128" if e else ""))
        return L
    VL=[]
    def emit(x, tag):
        A(x)
        for l in x.split("\n"):
            if l.strip().startswith(("buffer_","global_")): VL.append(tag)
    def vw(tag): return len(VL)-1-max(i for i,t in enumerate(VL) if t==tag)
    C1=int(os.environ.get("C1","1"))
    for c in range(1 if C1 else 2):
        for x in dma(c): emit(x,c)
    if C1 in (4,5):
        A("s_barrier")
        for x in dma(1): emit(x,1)
    PF=int(os.environ.get("PF","0"))
    pfa="""s_and_b32 s62, s6, 7
        s_mul_i32 s62, s62, 40
        s_mul_i32 s63, s45, 10
        s_add_u32 s62, s62, s63
        s_add_u32 s62, s62, 128
        v_lshrrev_b32 v34, 1, v0
        v_add_u32 v34, s62, v34
        v_mul_lo_u32 v34, v34, s53
        v_and_b32 v35, 1, v0
        v_lshl_add_u32 v34, v35, 7, v34
        v_add_u32 v34, s50, v34
        s_and_b32 s62, s7, 3
        s_lshl_b32 s62, s62, 3
        s_add_u32 s62, s62, s3
        s_mul_i32 s62, s62, 3584
        s_mul_i32 s63, s6, %d
        s_add_u32 s34, s62, s63
        v_mul_u32_u24 v35, 52, v0
        v_lshrrev_b32 v35, 8, v35
        v_lshlrev_b32 v35, 8, v35
        v_lshl_add_u32 v35, v0, 7, v35
        s_cmp_eq_u32 s57, 2
        s_cselect_b32 s35, 0x55555, 0xfffff""" % (128*896)
    pfx="""s_mov_b32 exec_lo, s35
        s_mov_b32 exec_hi, 0
        global_load_dword v62, v34, s[32:33]
        s_mov_b32 exec_lo, 0xfffff
        buffer_load_dword v63, v35, s[28:31], s34 offen offset:256
        s_mov_b64 exec, -1"""
    if PF: A(pfa.replace("s_cselect_b32 s35, 0x55555, 0xfffff","s_mov_b32 s35, 0xfffff\ns_cselect_b32 s35, 0x55555, s35"))
    if PF==1: emit(pfx,"pf")
    stamp(A,1)
    srd(A, 40, 24, WS_SIZE)
    A("""s_lshl_b32 s63, s2, 3
    s_add_u32 s63, s63, s3
    s_mul_i32 s64, s63, 4682
    s_lshr_b32 s64, s64, 16
    s_mul_i32 s65, s64, 14
    s_sub_u32 s65, s63, s65
    s_mul_i32 s54, s64, 1821
    s_lshr_b32 s54, s54, 16
    s_mul_i32 s55, s54, 36
    s_sub_u32 s55, s64, s55
    s_lshr_b32 s69, s65, 1
    s_lshl_b32 s69, s69, 2
    s_add_u32 s69, s69, s54
    s_lshl_b32 s69, s69, 3
    s_add_u32 s69, s69, s55
    s_lshl_b32 s69, s69, 1
    s_lshr_b32 s68, s54, 1
    s_xor_b32 s68, s68, s65
    s_and_b32 s68, s68, 1
    s_xor_b32 s68, s68, 1
    s_add_u32 s69, s69, s68
    s_lshl_b32 s69, s69, 10
    s_add_u32 s69, s69, %d
    s_mul_i32 s66, s54, 28
    s_add_u32 s66, s66, s55
    s_lshl_b32 s66, s66, 4
    s_sub_u32 s56, s55, 28
    s_lshr_b32 s58, s56, 1
    s_lshl_b32 s54, s54, 2
    s_add_u32 s58, s58, s54
    s_mul_i32 s58, s58, 28
    s_and_b32 s56, s56, 1
    s_lshl_b32 s54, s56, 4
    s_add_u32 s58, s58, s54
    s_lshl_b32 s56, s56, 4
    s_sub_u32 s56, 64, s56
    s_cmp_lt_u32 s55, 28
    s_cselect_b32 s36, s18, s16
    s_cselect_b32 s37, s19, s17
    s_mov_b32 s38, %d
    s_cselect_b32 s38, %d, s38
    s_cselect_b32 s66, s66, s58
    s_cselect_b32 s56, 64, s56
    s_and_b32 s37, s37, 0xffff
    s_mov_b32 s39, 0x00020000
    s_mul_i32 s66, s66, 896
    s_lshl_b32 s67, s65, 6
    s_add_u32 s66, s66, s67
    s_mul_i32 s67, s65, 144
    s_add_u32 s67, s67, s64
    s_lshl_b32 s67, s67, 10
    s_add_u32 s67, s67, %d
    s_cmp_lt_u32 s55, 28
    s_cselect_b32 s67, s67, s69
    s_cmp_lt_u32 s63, 2016
    s_cselect_b32 s67, s67, 0x7fff0000
    v_cmp_gt_u32 vcc, s56, v0
    v_lshrrev_b32 v21, 2, v0
    v_mul_u32_u24 v21, 896, v21
    v_lshl_add_u32 v21, v3, 4, v21
    v_mov_b32 v22, 0x7fff0000
    v_cndmask_b32 v21, v22, v21, vcc
    s_lshl_b32 s68, s3, 10
    s_add_u32 s68, s68, %d
    v_lshlrev_b32 v49, 4, v0
    v_mov_b32 v23, v21""" % (WO_OFF-56*1024, 448*896, 1792*896, WF_OFF, TS))
    tj="s_mov_b32 m0, s68\ns_nop 0\nbuffer_load_dwordx4 v23, s[36:39], s66 offen lds"
    if not C1: emit(tj,"T")
    ES=int(os.environ.get("ES","1")); E1=int(os.environ.get("E1","23")); E2=int(os.environ.get("E2","24"))
    A("""s_lshl_b32 s26, s63, 10
    s_add_u32 s26, s26, %d
    v_mov_b32 v248, -1
    v_mov_b32 v249, -1
    v_mov_b32 v250, -1
    v_mov_b32 v251, -1""" % (OF_OFF))
    st1="buffer_store_dwordx4 v[248:251], v49, s[40:43], s26 offen%s" % SC
    st2="buffer_store_dwordx4 v[228:231], v49, s[40:43], s67 offen%s" % SC
    if not ES: emit(st1,"s")
    C3=int(os.environ.get("C3","0"))
    if C3==1:
        for x in dma(2): emit(x,2)
    A("""v_bfe_u32 v20, v0, 1, 3
    v_xor_b32 v20, v20, v5
    v_lshlrev_b32 v20, 4, v20
    v_lshl_add_u32 v20, v6, 7, v20
    s_lshl_b32 s62, s46, 13
    v_add_u32 v20, s62, v20
    v_lshl_add_u32 v21, v5, 3, v2
    v_lshlrev_b32 v21, 8, v21
    v_xor_b32 v22, s47, v2
    v_lshl_add_u32 v21, v22, 6, v21
    v_and_b32 v22, 1, v1
    v_lshlrev_b32 v22, 5, v22
    v_lshl_add_u32 v22, v3, 3, v22
    v_add_u32 v21, v21, v22
    v_lshl_add_u32 v32, v5, 2, v2
    v_lshl_add_u32 v32, v32, 6, v22
    v_add_u32 v48, s68, v32""")
    for i in range(4):
        A("""s_xor_b32 s62, s48, %d
        s_lshl_b32 s69, s62, 5
        v_xor_b32 v%d, s69, v20
        s_mul_i32 s62, s62, 24576
        s_add_u32 s62, s62, %d
        v_add_u32 v%d, s62, v21""" % (i, 24+i, WB, 28+i))
    PK=int(os.environ.get("PK","0"))
    for r in (range(232,240) if PK else range(36,40)): A("v_mov_b32 v%d, 0" % r)
    A("""v_mov_b32 v33, 0x3f803f80
    v_cmp_eq_u32 vcc, 0, v6
    v_cmp_eq_u32 s[70:71], 20, v6
    s_mov_b32 s72, 0xffff0000
    s_mov_b32 s73, 0x07060302
    s_or_b64 vcc, vcc, s[70:71]
    s_mov_b32 s74, 0x%x
    v_cndmask_b32 v168, 0, v33, vcc
    v_mov_b32 v169, v168
    v_mov_b32 v170, v168
    v_mov_b32 v171, v168
    s_lshl_b32 s62, s46, 12
    s_add_u32 s62, s62, 16384
    v_lshlrev_b32 v44, 6, v6
    v_add_u32 v44, s62, v44
    s_lshl_b32 s69, s47, 4
    v_lshl_add_u32 v45, v5, 3, v44
    v_add_u32 v45, s69, v45
    s_lshl_b32 s62, s47, 9
    s_add_u32 s62, s62, 24576
    v_lshlrev_b32 v46, 2, v6
    v_add_u32 v46, s62, v46
    s_lshl_b32 s69, s46, 7
    v_add_u32 v47, s69, v46
    v_cmp_gt_u32 vcc, 32, v0
    s_lshl_b32 s75, s6, 2
    s_lshl_b32 s62, s46, 1
    s_add_u32 s75, s75, s62
    v_mov_b32 v190, 0
    v_mov_b32 v191, 0
    v_mov_b32 v194, 0
    v_mov_b32 v195, 0""" % fbits(1.0/448))
    D2=int(os.environ.get("D2","0"))
    def bb(P): return [128,144,232][P%3] if D2 else 128+16*(P%2)
    def xr(P, tok): return ((172+8*D2*((P//4)%2)) if P%4==0 else bb(P))+4*tok
    def wr(P, hf): return bb(P)+8+4*hf
    def reads(P):
        c,i=divmod(P,4); st=c%3; L=[]
        for hf in range(2):
            for z in range(2):
                L.append("ds_read_b64_tr_b16 v[%d:%d], v%d offset:%d" % (wr(P,hf)+2*z, wr(P,hf)+2*z+1, 28+i, st*8192+hf*4096+z*1024))
            L.append("ds_read_b128 %s, v%d offset:%d" % (r4(xr(P,hf)), 24+i, st*16384+hf*4096))
        return L
    so=[]
    for tok in range(2):
        for r in range(4):
            src=172+4*tok+r; t0=40+2*(r%2); t1=t0+1
            if PK:
                sa=232+4*tok; tt="v[%d:%d]" % (t0,t1)
                so+=["v_and_b32 v%d, s72, v%d" % (t0,src), "v_lshlrev_b32 v%d, 16, v%d" % (t1,src),
                    "v_pk_add_f32 v[%d:%d], v[%d:%d], %s" % (sa,sa+1,sa,sa+1,tt), "v_pk_fma_f32 v[%d:%d], %s, %s, v[%d:%d]" % (sa+2,sa+3,tt,tt,sa+2,sa+3)]
                continue
            so+=["v_and_b32 v%d, s72, v%d" % (t0,src), "v_lshlrev_b32 v%d, 16, v%d" % (t1,src),
                "v_add_f32 v%d, v%d, v%d" % (36+2*tok,36+2*tok,t0), "v_fmac_f32 v%d, v%d, v%d" % (37+2*tok,t0,t0),
                "v_add_f32 v%d, v%d, v%d" % (36+2*tok,36+2*tok,t1), "v_fmac_f32 v%d, v%d, v%d" % (37+2*tok,t1,t1)]
    MS=int(os.environ.get("MS","0"))
    if MS:
        A("v_mov_b32 v34, v33\nv_mov_b32 v35, v33\nv_cmp_eq_u32 s[76:77], 1, v3\nv_cmp_eq_u32 s[78:79], 2, v3\nv_cmp_eq_u32 s[34:35], 3, v3")
        def ms(first):
            L=[]
            for z in range(2):
                for tok in range(2):
                    src="v[%d:%d]" % (172+4*tok+2*z,173+4*tok+2*z)
                    for kind in range(2):
                        acc=r4(232+8*tok+4*kind)
                        L.append("v_mfma_f32_4x4x4_16b_bf16 %s, %s, %s, %s" % (acc, src if kind else "v[34:35]", src, "0" if first and z==0 else acc))
            return L
        msel=[]
        for tok in range(2):
            q=236+8*tok
            msel+=["v_mov_b32 v%d, v%d" % (36+2*tok, 232+8*tok), "v_cndmask_b32 v%d, v%d, v%d, s[76:77]" % (37+2*tok,q,q+1),
                   "v_cndmask_b32 v%d, v%d, v%d, s[78:79]" % (37+2*tok,37+2*tok,q+2), "v_cndmask_b32 v%d, v%d, v%d, s[34:35]" % (37+2*tok,37+2*tok,q+3)]
    fm=[]
    for st in (8,4,2):
        for tok in range(2):
            b=196+16*tok
            for j in range(st): fm.append("v_add_f32 v%d, v%d, v%d" % (b+j,b+j,b+j+st))
    seq="""v_mul_f32 v{s}, s74, v{s}
        v_mul_f32 v{q}, s74, v{q}
        v_fma_f32 v{q}, -v{s}, v{s}, v{q}
        v_max_f32 v{q}, 0, v{q}
        v_cvt_pk_bf16_f32 v{f}, -v{s}, -v{s}
        v_cvt_pk_bf16_f32 v{q}, v{q}, v{q}
        v_and_b32 v{q}, s72, v{q}
        v_add_f32 v{q}, 0x{eps:x}, v{q}
        v_cvt_pk_bf16_f32 v{q}, v{q}, v{q}
        v_and_b32 v{q}, s72, v{q}
        v_sqrt_f32 v{q}, v{q}
        v_mov_b32 v{f1}, v{f}
        v_cvt_pk_bf16_f32 v{q}, v{q}, v{q}
        v_and_b32 v{d}, s72, v{q}
        v_rcp_f32 v{r}, v{d}
        v_mov_b32 v{f2}, v{f}
        v_mov_b32 v{f3}, v{f}"""
    s0,s1=[seq.format(s=196+16*tok,q=197+16*tok,f=180+4*tok,f1=181+4*tok,f2=182+4*tok,f3=183+4*tok,d=54+tok,r=56+tok,eps=fbits(1e-5)).split("\n") for tok in range(2)]
    for a_,b_ in zip(s0,s1): fm+=[a_,b_]
    for hf in range(2):
        fm+="""v_add_f32 v{c}, v{c}, v{c1}
        v_cndmask_b32 v{c}, 0, v{c}, vcc
        v_and_b32 v58, s72, v{c}
        v_sub_f32 v59, v{c}, v58
        v_and_b32 v60, s72, v59
        v_sub_f32 v61, v59, v60
        v_perm_b32 v{f}, v60, v58, s73
        v_lshrrev_b32 v{f1}, 16, v61""".format(c=50+2*hf,c1=51+2*hf,f=188+4*hf,f1=189+4*hf).split("\n")
    if C1 in (1,3):
        for x in dma(1): emit(x,1)
        if C1==1: emit(tj,"T")
    if C1==5:
        for x in dma(2): emit(x,2)
        C3=1
    A("s_waitcnt vmcnt(%d)\ns_barrier" % vw(0))
    stamp(A,2)
    for x in reads(0): A(x)
    if C1==2:
        for x in dma(1): emit(x,1)
    if C1>=2: emit(tj,"T")
    if D2:
        for x in reads(1): A(x)
    if PF==2: emit(pfx,"pf")
    pend=[(x,2) for x in dma(2)] if not C3 else []
    if os.environ.get("PR"): A("s_cmp_eq_u32 s44, 0\ns_cbranch_scc1 k1_pr\ns_setprio 1\nk1_pr:")
    for P in range(28):
        c,i=divmod(P,4)
        if os.environ.get("FS"):
            if P in (4,8,12,20): stamp(A,{4:1,8:3,12:4,20:5}[P])
        elif P==12: stamp(A,3)
        rd=reads(P+1+D2) if P+1+D2<28 else []
        va=[]
        if i==3-D2 and c<6:
            assert not pend
            A("s_waitcnt vmcnt(%d) lgkmcnt(0)\ns_barrier" % vw(c+1))
            if c+3<=6: pend=[(x,c+3) for x in dma(c+3)]
        elif P==26:
            A("""s_mov_b32 exec_hi, 0
            ds_write_b32 v47, v160
            ds_write_b32 v47, v164 offset:256
            s_mov_b32 exec_hi, -1
            ds_write_b64 v45, v[36:37]
            ds_write_b64 v45, v[38:39] offset:2048
            s_waitcnt lgkmcnt(0)
            s_barrier""")
            ex=[]
            for tok in range(2):
                for q in range(4): ex.append("ds_read_b128 %s, v44 offset:%d" % (r4(196+16*tok+4*q), tok*2048+q*16))
            ex+=["ds_read2_b32 v[50:51], v46 offset0:0 offset1:32","ds_read2_b32 v[52:53], v46 offset0:64 offset1:96"]
            rd=ex+rd
        else:
            A("s_waitcnt lgkmcnt(%d)" % (6 if D2 and P<27 else 0))
        ns=len(so)
        if c<6:
            if i<3: va=so[ns*i//3//4*4:ns*(i+1)//3//4*4] if PK else so[16*i:16*i+16]
        elif i<2:
            va=so[ns//2*i:ns//2*(i+1)]
            if PK and i==1: va=va+["v_add_f32 v%d, v%d, v%d" % (36+j,232+2*j,233+2*j) for j in range(4)]
        if MS:
            va=[]
            if c<6:
                if MS==1 and i in (2,): va=ms(c==0)[:4]
                if MS==1 and i==1: va=[]
                if MS==1 and i==0: va=[]
            m_=ms(c==0)
            if c<6: va={0:m_[:2],1:m_[2:4],2:m_[4:],3:[]}[i] if MS==1 else {0:m_[:4],1:m_[4:],2:[],3:[]}[i]
            else: va={0:m_,1:[],2:[],3:[]}[i]
            if P==25: va=["s_nop 0"]*3+msel
        if D2 and c%2:
            for r in range(172,180): va=[x.replace("v%d" % r, "v%d" % (r+8)) for x in va]
        if P==9: rd=rd+["ds_read_b64_tr_b16 v[228:229], v48","ds_read_b64_tr_b16 v[230:231], v48 offset:512"]
        if P==27: va=fm
        take=2 if i!=2 else len(pend)
        if D2: take=3 if P<2 else 2
        dm=pend[:take]; pend=pend[take:]
        if ES and P==E1: dm=dm+[(st1,"s")]
        if ES and P==E2: dm=dm+[(st2,"s")]
        if PF==3 and P==2-D2: dm=dm+[(pfx,"pf")]
        mm=[]
        for hf in range(2):
            if i<2:
                mm.append("v_mfma_f32_16x16x32_bf16 %s, v[168:171], %s, %s" % (r4(160+4*hf),r4(wr(P,hf)),r4(160+4*hf) if P else "0"))
            for tok in range(2):
                acc=64+32*hf+16*tok
                mm.append("%s %s, %s, %s, %s" % (MF,r16(acc),r4(wr(P,hf)),r4(xr(P,tok)),r16(acc) if P else "0"))
        if P==25: mm=[mm[0],mm[3],mm[1],mm[2],mm[4],mm[5]]
        X=os.environ.get("X","")
        if "v" in X and P<27: va=[]
        if "c" in X: mm=[m for m in mm if "16x16" not in m]
        if "d" in X: dm=[]
        if "t" in X: rd=[r for r in rd if "tr_b16" not in r]
        if "x" in X: rd=[r for r in rd if "b128" not in r]
        n=len(mm); slots=[[] for _ in range(n)]
        nr=RDS
        for j,x in enumerate(rd): slots[min(n-1,j*nr//len(rd))].append(x)
        DP=int(os.environ.get("DP","2"))
        for j,x in enumerate(dm): slots[n-DP+(j*2)//len(dm)].append(x)
        for j,x in enumerate(va): slots[j*n//len(va)].append(x)
        for j in range(n):
            A(mm[j])
            for x in slots[j]:
                if isinstance(x,tuple): emit(*x)
                else: A(x)
    if not os.environ.get("FS"): stamp(A,4)
    A("s_nop 1" if ES else st2+"\ns_nop 0")
    for tok in range(2):
        for hf in range(2):
            acc=64+32*hf+16*tok
            A("%s %s, %s, %s, %s" % (MF,r16(acc),r4(188+4*hf),r4(180+4*tok),r16(acc)))
    A("s_cmp_ge_u32 s7, 14\ns_cbranch_scc1 k1_qkv")
    if not os.environ.get("FS"): stamp(A,5)
    A("""v_mul_f32 v58, 0x%x, v56
    v_mul_f32 v59, 0x%x, v57
    s_mul_i32 s76, s75, %d
    s_lshl_b32 s62, s7, 2
    s_add_u32 s62, s62, s47
    s_lshl_b32 s62, s62, 11
    s_add_u32 s76, s76, s62
    s_add_u32 s76, s76, %d
    s_add_u32 s77, s76, %d
    s_cmp_eq_u32 s44, 1
    s_nop 3""" % (fbits(-LOG2E), fbits(-LOG2E), 112*1024, HF_OFF, 112*1024))
    for tok in range(2):
        G=64+16*tok; U=96+16*tok
        for half in range(2):
            rs=range(8*half,8*half+8)
            PE=int(os.environ.get("PE","1"))
            p2=lambda r: "v[%d:%d]" % (r,r+1)
            if PE:
                for r in rs[::2]: A("v_pk_mul_f32 %s, %s, v[58:59] op_sel:[0,%d] op_sel_hi:[1,%d]" % (p2(G+r),p2(G+r),tok,tok))
            else:
                for r in rs: A("v_mul_f32 v%d, v%d, v%d" % (G+r,G+r,58+tok))
            for r in rs: A("v_exp_f32 v%d, v%d" % (G+r,G+r))
            if PE:
                for r in rs[::2]: A("v_pk_fma_f32 %s, %s, v[54:55], v[54:55] op_sel:[0,%d,%d] op_sel_hi:[1,%d,%d]" % (p2(G+r),p2(G+r),tok,tok,tok,tok))
            else:
                for r in rs: A("v_fma_f32 v%d, v%d, v%d, v%d" % (G+r,G+r,54+tok,54+tok))
            for r in rs: A("v_rcp_f32 v%d, v%d" % (G+r,G+r))
            if PE:
                for r in rs[::2]: A("v_pk_mul_f32 %s, %s, %s" % (p2(U+r),p2(U+r),p2(G+r)))
            else:
                for r in rs: A("v_mul_f32 v%d, v%d, v%d" % (U+r,U+r,G+r))
            o=128+8*tok+4*half
            for j in range(4): A("v_cvt_pk_bf16_f32 v%d, v%d, v%d" % (o+j,U+8*half+2*j,U+8*half+2*j+1))
            HP=int(os.environ.get("HP","0")); HY=int(os.environ.get("HY","0"))
            stx="buffer_store_dwordx4 %s, v49, s[40:43], s%d offen offset:%d" % (r4(o),76+tok,half*1024)
            if 2*tok+half>=4-HY:
                A("s_cbranch_scc1 k1_y%d\n%s%s\ns_branch k1_z%d\nk1_y%d:\n%s\nk1_z%d:" % (o,stx,SC,o,o,stx,o))
            else: A(stx+(SC if 2*tok+half<4-HP else ""))
    if os.environ.get("QS"): stamp(A,3)
    stamp_out(A,7)
    A("s_endpgm")
    A.label("k1_qkv")
    if not os.environ.get("FS"): stamp(A,5)
    qs=LOG2E*28**-0.5
    A("""s_sub_u32 s76, s7, 14
    s_lshl_b32 s76, s76, 3
    s_add_u32 s76, s76, s47
    s_mov_b32 s77, 0x%x
    s_cmp_ge_u32 s76, 10
    s_cselect_b32 s78, 1.0, s77
    s_cselect_b32 s71, -1, 0
    s_mov_b32 s70, 0
    s_cmp_eq_u32 s76, 10
    s_cselect_b32 s79, 0x3f803f80, 0
    s_cselect_b32 s80, 0x3f80, 0
    s_or_b32 s79, s79, 0x3f80
    v_mov_b32 v40, s79
    v_mov_b32 v41, s80
    v_mul_f32 v58, s77, v56
    v_mul_f32 v59, s77, v57
    v_mul_f32 v60, s78, v56
    v_mul_f32 v61, s78, v57
    s_mul_i32 s62, s46, 49152
    s_add_u32 s62, s62, %d
    v_and_b32 v42, 15, v0
    s_lshl_b32 s69, s47, 2
    v_xor_b32 v42, s69, v42
    v_lshlrev_b32 v42, 4, v42
    v_lshl_add_u32 v42, v5, 3, v42
    v_lshl_add_u32 v42, v6, 9, v42
    v_add_u32 v42, s62, v42""" % (fbits(qs), WB+8192))
    for q in range(1,4): A("v_xor_b32 v%d, %d, v42" % (32+q, 16*q))
    A("v_mov_b32 v32, v42")
    for hf in range(2):
        for tok in range(2):
            a0=64+32*hf+16*tok; o=128+16*hf+8*tok
            for j in range(0,16,2): A("v_pk_mul_f32 v[%d:%d], v[%d:%d], v[%d:%d] op_sel:[0,%d] op_sel_hi:[1,%d]" % (a0+j,a0+j+1,a0+j,a0+j+1,58+2*hf,59+2*hf,tok,tok))
            for j in range(8): A("v_cvt_pk_bf16_f32 v%d, v%d, v%d" % (o+j,a0+2*j,a0+2*j+1))
            if hf: A("v_cndmask_b32 v%d, v%d, v40, s[70:71]\nv_cndmask_b32 v%d, v%d, v41, s[70:71]" % (o+6,o+6,o+7,o+7))
            for q in range(4): A("ds_write_b64 v%d, v[%d:%d] offset:%d" % (32+q,o+2*q,o+2*q+1,tok*24576+hf*256))
    if os.environ.get("QS"): stamp(A,1)
    A("""s_mul_i32 s62, s47, 24576
    s_lshl_b32 s69, s46, 13
    s_add_u32 s62, s62, s69
    s_add_u32 s62, s62, %d
    v_xor_b32 v43, v6, v5
    v_lshlrev_b32 v43, 4, v43
    v_lshl_add_u32 v43, v5, 9, v43
    v_add_u32 v43, s62, v43
    s_lshl_b32 s62, s6, 7
    s_add_u32 s62, s62, s49
    s_mul_i32 s62, s62, 896
    s_sub_u32 s69, s7, 14
    s_lshl_b32 s69, s69, 9
    s_add_u32 s81, s62, s69
    s_cmp_eq_u32 s7, 15
    s_cselect_b32 s69, 24, 32
    v_mul_u32_u24 v44, 896, v5
    v_lshl_add_u32 v44, v6, 4, v44
    v_cmp_gt_u32 vcc, s69, v6
    v_mov_b32 v45, 0x7fff0000
    s_waitcnt lgkmcnt(0)
    s_barrier
    v_cndmask_b32 v44, v45, v44, vcc""" % (WB+8192))
    if os.environ.get("QS"): stamp(A,2)
    KS=os.environ.get("KS","")
    A("s_cmp_eq_u32 s7, 14\ns_cbranch_scc1 k1_fin")
    A("""s_lshl_b32 s77, s6, 2
    s_add_u32 s77, s77, s45
    s_lshl_b32 s77, s77, 12
    s_add_u32 s77, s77, %d
    s_mul_i32 s62, s45, 24576
    s_add_u32 s62, s62, %d
    s_cmp_eq_u32 s44, 1
    s_cbranch_scc1 k1_v
    v_and_b32 v52, 15, v0
    v_xor_b32 v52, v52, v5
    v_xor_b32 v52, 24, v52
    v_lshlrev_b32 v52, 4, v52
    v_lshl_add_u32 v52, v6, 9, v52
    v_add_u32 v52, s62, v52
    v_xor_b32 v53, 32, v52
    ds_read_b128 v[96:99], v52
    ds_read_b128 v[100:103], v53
    s_waitcnt lgkmcnt(0)
    buffer_store_dwordx4 v[96:99], v49, s[40:43], s77 offen%s
    buffer_store_dwordx4 v[100:103], v49, s[40:43], s77 offen offset:1024%s
    s_branch k1_fin""" % (KV_OFF, WB+8192, KS, KS))
    A.label("k1_v")
    A("""v_lshl_add_u32 v52, v5, 2, v2
    v_and_b32 v53, 1, v1
    v_lshlrev_b32 v53, 1, v53
    v_bfe_u32 v55, v0, 1, 1
    v_add3_u32 v53, v53, v55, 28
    v_xor_b32 v53, v53, v52
    v_lshlrev_b32 v53, 4, v53
    v_lshl_add_u32 v53, v52, 9, v53
    v_and_b32 v55, 1, v0
    v_lshl_add_u32 v53, v55, 3, v53
    v_add_u32 v52, s62, v53
    v_xor_b32 v53, 128, v52
    ds_read_b64_tr_b16 v[96:97], v52
    ds_read_b64_tr_b16 v[98:99], v53 offset:4096
    ds_read_b64_tr_b16 v[100:101], v52 offset:8192
    ds_read_b64_tr_b16 v[102:103], v53 offset:12288
    s_waitcnt lgkmcnt(0)
    buffer_store_dwordx4 v[96:99], v49, s[40:43], s77 offen offset:2048%s
    buffer_store_dwordx4 v[100:103], v49, s[40:43], s77 offen offset:3072%s""" % (KS, KS))
    A.label("k1_fin")
    for i in range(8):
        A("v_xor_b32 v45, %d, v43\nds_read_b128 %s, v45 offset:%d" % (32*i, r4(64+4*i), i*1024))
    for i in range(8):
        A("s_waitcnt lgkmcnt(%d)\nbuffer_store_dwordx4 %s, v44, s[40:43], s81 offen%s\ns_add_u32 s81, s81, 1792" % (7-i, r4(64+4*i), SC if i<int(os.environ.get("QP","0")) else ""))
    if os.environ.get("QS"): stamp(A,3)
    stamp_out(A,7)
    A.label("k1_done")
    A("s_endpgm")
    return kernel_desc(name, 252, 102)
```

```python
from asmlib import *
from k1 import *
import sys
K2_LDS=102656
K2_BLOCK=256
EX2=49152; FL=98304; MX=98560
def a4(i): return "a[%d:%d]" % (i,i+3)
def a16(i): return "a[%d:%d]" % (i,i+15)
OOB=0x7fff0000
E0=lambda k,d: int(os.environ.get(k,str(d)))
OSC=os.environ.get("OSC","")
QM=int(os.environ.get("QM","1")); LP=int(os.environ.get("LP","0")); GS=int(os.environ.get("GS","28"))
class VM:
    def __init__(s): s.log=[]
    def issue(s, tag): s.log.append(tag)
    def need(s, tags):
        idx=max(i for i,t in enumerate(s.log) if t in tags and all(tt not in tags or True for tt in []) )
        return len(s.log)-1-idx
def gen_k2(A, name="k2_kernel"):
    kernel_head(A, name)
    A("s_cmp_ge_u32 s2, 256\ns_cbranch_scc1 k2_done")
    stamp(A,0); stamp_rt(A,7)
    A("""s_load_dwordx2 s[24:25], s[0:1], 88
    s_load_dwordx2 s[8:9], s[0:1], 0
    s_load_dwordx2 s[10:11], s[0:1], 72
    v_readfirstlane_b32 s3, v0
    v_and_b32 v0, 63, v0
    v_lshlrev_b32 v2, 4, v0
    v_lshrrev_b32 v5, 5, v0
    v_and_b32 v6, 31, v0
    s_lshr_b32 s3, s3, 6
    s_and_b32 s4, s2, 7
    s_lshl_b32 s4, s4, 2
    s_bfe_u32 s5, s2, 0x20003
    s_add_u32 s4, s4, s5
    s_lshr_b32 s5, s2, 5
    s_xor_b32 s6, s3, 3
    s_mov_b32 s72, 0xffff0000
    s_mov_b32 s73, 0x07060302
    s_mov_b32 s60, 0
    s_lshl_b32 s7, s4, 3
    s_add_u32 s7, s7, s5
    s_mul_i32 s12, s7, 7168
    %s
    v_mul_u32_u24 v3, %d, v1
    v_mad_u32_u24 v3, v4, 56, v3
    v_lshl_add_u32 v3, v5, 4, v3
    s_lshl_b32 s46, s3, 16
    s_add_u32 s46, s46, %d
    s_mov_b32 s47, %d""" % ("v_lshrrev_b32 v1, 2, v6\nv_and_b32 v4, 3, v0" if QM else "v_and_b32 v1, 7, v0\nv_lshrrev_b32 v4, 3, v6", 1040 if os.environ.get("QL","0")=="1" else 896, KV_OFF, KV_OFF))
    if os.environ.get("QL","0")=="1": A("s_mul_i32 s13, s3, 2080\ns_mul_i32 s14, s3, 1792\ns_add_u32 s14, s14, s12\ns_mov_b32 s12, 0")
    for g in range(4): A("s_xor_b32 s%d, s6, %d\ns_mul_i32 s%d, s%d, 224\ns_add_u32 s%d, s%d, s12" % (52+g,g,52+g,52+g,52+g,52+g))
    A("s_waitcnt lgkmcnt(0)")
    srd(A, 40, 24, WS_SIZE)
    Q=lambda g,s: 16+8*g+4*s
    O=lambda g: 48+16*g
    S=lambda b: 112+16*b
    P=lambda b: 144+8*b
    KV=lambda st,j: 160+16*st+4*j
    F=lambda st,j: 64+16*st+4*j
    T=lambda g: [112,128,224,O(0)][g]
    vm=VM()
    A("buffer_load_dwordx4 %s, v2, s[40:43], s47 offen\nbuffer_load_dwordx4 %s, v2, s[40:43], s47 offen offset:1024" % (r4(KV(3,0)), r4(KV(3,1))))
    QL=int(os.environ.get("QL","0"))
    if QL:
        A("""s_mov_b32 m0, s13
        s_add_u32 s13, s13, 1040
        buffer_load_dwordx4 v2, s[40:43], s14 offen lds
        s_mov_b32 m0, s13
        s_add_u32 s14, s14, 896
        buffer_load_dwordx4 v2, s[40:43], s14 offen lds""")
        for g in range(4): A("v_add_u32 v%d, s%d, v3" % (12+g, 52+g))
    else:
        for g in range(4):
            for s_ in range(2):
                A("buffer_load_dwordx4 %s, v3, s[40:43], s%d offen offset:%d" % (r4(Q(g,s_)), 52+g, s_*32))
    VO=[2,248,249,250]
    def kvload(st,pro=False): return [("buffer_load_dwordx4 %s, v%d, s[40:43], s%d offen offset:%d" % (r4(KV(st,j)), VO[st], 48 if (st==3 or pro) else 51, j*1024), ("kv",st,j)) for j in range(4)]
    def gload(st): return [("buffer_load_dwordx4 %s, v%d, s[40:43], s%d offen offset:%d" % (a4(F(st,j)), VO[st//4], 68+j, (st%4)*1024), ("g",st,j)) for j in range(4)]
    def em(L):
        for x,t in L: A(x); vm.issue(t)
    for k in range(1,4): A("v_add_u32 v%d, %d, v2" % (VO[k], 4096*k))
    A.label("k2_restart")
    A("s_mov_b32 s48, s46\ns_add_u32 s51, s46, 16384")
    LK=int(os.environ.get("LK","1"))
    em(kvload(0,1))
    if not LK: em(kvload(1,1)); em(kvload(2,1))
    A("""s_and_b32 s13, s6, 1
    s_lshr_b32 s14, s6, 1
    s_lshl_b32 s15, s4, 1
    s_add_u32 s16, s15, s13
    s_xor_b32 s17, s16, 1
    s_mul_i32 s18, s3, %d
    s_add_u32 s18, s18, %d
    s_mul_i32 s64, s16, %d
    s_add_u32 s64, s64, s18
    s_mul_i32 s65, s17, %d
    s_add_u32 s65, s65, s18
    s_lshl_b32 s15, s5, 1
    s_add_u32 s19, s15, s14
    s_xor_b32 s20, s19, 1
    s_mul_i32 s18, s3, %d
    s_add_u32 s18, s18, %d
    s_mul_i32 s66, s19, %d
    s_add_u32 s66, s66, s18
    s_mul_i32 s67, s20, %d
    s_add_u32 s67, s67, s18
    s_cmp_lt_u32 s5, 7
    s_cselect_b32 s64, s64, 0x%x
    s_cselect_b32 s65, s65, 0x%x
    s_cselect_b32 s66, s66, 0x%x
    s_cselect_b32 s67, s67, 0x%x
    s_lshl_b32 s21, s5, 2
    s_add_u32 s21, s21, s3
    s_lshl_b32 s21, s21, 14
    s_add_u32 s21, s21, %d
    s_mul_i32 s61, s17, %d
    s_lshl_b32 s62, s20, 6
    s_add_u32 s74, s61, s62
    v_mul_u32_u24 v7, 896, v6
    v_lshl_add_u32 v7, v5, 4, v7""" % (28*1024, HF_OFF, 112*1024, 112*1024, 36*1024, WF_OFF, 144*1024, 144*1024, OOB,OOB,OOB,OOB, WO_OFF, 32*896))
    for j in range(4): A("s_add_u32 s%d, s%d, 16384\ns_add_u32 s%d, s46, %d" % (68+j,64+j,56+j,16384*j))
    for tau in range(3): A("s_xor_b32 s61, s6, %d\ns_mul_i32 s61, s61, 12288\ns_add_u32 s61, s61, %d\nv_add_u32 v%d, s61, v2" % (tau, tau*4096, 251+tau))
    A("""s_mul_i32 s61, s3, 12288
    v_add_u32 v254, s61, v2
    s_mov_b32 s22, 0x5e800000
    s_lshl_b32 s61, s3, 2
    s_add_u32 s61, s61, %d
    v_mov_b32 v3, s61
    s_and_b32 s61, s7, 3
    s_lshl_b32 s61, s61, 3
    v_add_u32 v255, s61, v1
    v_lshl_add_u32 v255, v5, 5, v255
    v_lshlrev_b32 v255, 4, v255
    v_lshl_add_u32 v255, v4, 11, v255
    s_lshr_b32 s75, s7, 2
    s_lshl_b32 s75, s75, 15
    s_lshl_b32 s61, s3, 13
    s_add_u32 s61, s61, %d
    s_add_u32 s75, s75, s61
    s_lshl_b32 s76, s16, 15
    s_add_u32 s76, s76, s61
    s_lshl_b32 s77, s17, 15
    s_add_u32 s77, s77, s61
    s_mov_b32 s23, -2
    s_mov_b32 s80, 0""" % (FL, OF_OFF))
    srd(A, 28, 8, 2048*896)
    srd(A, 32, 10, 2048*896)
    def zero_mslots():
        A("s_mov_b32 exec_lo, 0")
        for g in range(4): A("v_mov_b32 v%d, 0\nv_mov_b32 v%d, 0" % (Q(g,1)+2, Q(g,1)+3))
        A("s_mov_b32 exec_lo, -1")
    M_=lambda g: 8+g
    def patch_all(off):
        t=lambda g,k: P(0)+2*g+k
        for g in range(4): A("v_sub_f32 v%d, %s, v%d" % (M_(g), off, M_(g)))
        for g in range(4): A("v_and_b32 v%d, s72, v%d" % (t(g,0), M_(g)))
        for g in range(4): A("v_sub_f32 v%d, v%d, v%d" % (M_(g), M_(g), t(g,0)))
        for g in range(4): A("v_and_b32 v%d, s72, v%d" % (t(g,1), M_(g)))
        for g in range(4): A("v_sub_f32 v%d, v%d, v%d" % (M_(g), M_(g), t(g,1)))
        A("s_mov_b32 exec_lo, 0")
        for g in range(4): A("v_perm_b32 v%d, v%d, v%d, s73\nv_lshrrev_b32 v%d, 16, v%d" % (Q(g,1)+2, t(g,1), t(g,0), Q(g,1)+3, M_(g)))
        A("s_mov_b32 exec_lo, -1")
    def max16(dst, b, first):
        if first: A("v_max_f32 v%d, v%d, v%d" % (dst, b, b+1))
        else: A("v_max3_f32 v%d, v%d, v%d, v%d" % (dst, dst, b, b+1))
        for j in range(2,16,2): A("v_max3_f32 v%d, v%d, v%d, v%d" % (dst, dst, b+j, b+j+1))
    def xhalf_all():
        for g in range(4): A("v_mov_b32 v%d, v%d" % (12+g, M_(g)))
        A("s_nop 0")
        for g in range(4): A("v_permlane32_swap_b32 v%d, v%d" % (M_(g), 12+g))
        for g in range(4): A("v_max_f32 v%d, v%d, v%d" % (M_(g), M_(g), 12+g))
    def qk_all():
        for g in range(4):
            A("%s %s, %s, %s, 0" % (MF, r16(T(g)), r4(KV(3,0)), r4(Q(g,0))))
            A("%s %s, %s, %s, %s" % (MF, r16(T(g)), r4(KV(3,1)), r4(Q(g,1)), r16(T(g))))
    if QL:
        if E0("KE",1): em(kvload(1,1))
        A("s_cmp_lg_u32 s60, 0\ns_cbranch_scc1 k2_noq")
        A("s_waitcnt vmcnt(%d)\ns_barrier" % (4+4*E0("KE",1)))
        for g in range(4):
            for s_ in range(2): A("ds_read2_b64 %s, v%d offset0:%d offset1:%d" % (r4(Q(g,s_)), 12+g, 4*s_, 4*s_+1))
        A.label("k2_noq")
        if not E0("KE",1): em(kvload(1,1))
        em(kvload(2,1))
        A("s_cbranch_scc1 k2_skipm0")
        for g in range(4):
            A("s_waitcnt lgkmcnt(%d)" % (6-2*g))
            A("%s %s, %s, %s, 0" % (MF, r16(T(g)), r4(KV(3,0)), r4(Q(g,0))))
            A("s_mov_b32 exec_lo, 0\nv_mov_b32 v%d, 0\nv_mov_b32 v%d, 0\ns_mov_b32 exec_lo, -1\ns_nop 0" % (Q(g,1)+2, Q(g,1)+3))
            A("%s %s, %s, %s, %s" % (MF, r16(T(g)), r4(KV(3,1)), r4(Q(g,1)), r16(T(g))))
            if g: max16(M_(g-1), T(g-1), True)
        A("s_nop 7\ns_nop 3")
        max16(M_(3), T(3), True)
    else:
        A("s_waitcnt vmcnt(4)")
        em(kvload(1,1)); em(kvload(2,1))
        A("s_cmp_lg_u32 s60, 0\ns_cbranch_scc1 k2_skipm0")
        A("s_waitcnt vmcnt(12)")
        zero_mslots()
        A("s_nop 0")
        qk_all()
        A("s_nop 5")
        for g in range(4): max16(M_(g), T(g), True)
    xhalf_all(); patch_all("0xc2800000")
    A.label("k2_skipm0")
    A("s_waitcnt vmcnt(10)")
    A("%s %s, %s, %s, 0" % (MF, r16(S(0)), r4(KV(0,0)), r4(Q(0,0))))
    A("%s %s, %s, %s, %s" % (MF, r16(S(0)), r4(KV(0,1)), r4(Q(0,1)), r16(S(0))))
    E=lambda k,d: int(os.environ.get(k,str(d)))
    NL=E("NL",14); T1=E("T1",4); T2=E("T2",6); T3=E("T3",6); GS=E("GS",32); MAXL=E("MAXL",2); WFL=E("WFL",20)
    NST=12
    def FR(st,j): return a4(64+16*st+4*j) if st<7 else (a4(192+16*(st-7)+4*j) if st<11 else r4(224+4*j))
    def gld(n): return [("buffer_load_dwordx4 %s, v%d, s[40:43], s%d offen offset:%d" % (FR(n%NST,j), VO[(n%16)//4], (64 if n<16 else 68)+j, (n%4)*1024), ("g",n,j)) for j in range(4)]
    def kvl(t): return [("buffer_load_dwordx4 %s, v%d, s[40:43], s%d offen offset:%d" % (r4(KV(t%4,j)), VO[t%4], 56+t//4 if t<16 else 21, j*1024), ("kv",t,j)) for j in range(4)]
    wl=[("buffer_load_dwordx4 %s, v250, s[40:43], s21 offen offset:%d" % (a4(176+4*j), j*1024), ("x",j)) for j in range(4)]
    xl=[("buffer_load_dwordx4 %s, v7, s[28:31], s74 offen offset:%d" % (r4(240+4*j), j*32), ("x",4+j)) for j in range(2)]
    items=[]; gi=0; pk=[]; pg=[]; pd=[]
    for n in range(NST): pg+=gld(n)
    def G():
        nonlocal gi, pg
        if gi>=112: return
        n,tau=divmod(gi,4); ct,tok=divmod(tau,2); gi+=1
        items.append(("m","%s %s, %s, %s, %s" % (MF, a16(16*tau), FR(n%NST,2+ct), FR(n%NST,tok), a16(16*tau) if n else "0"), [("g",n,2+ct),("g",n,tok)]))
        if tau==3 and n+NST<28: pg=pg+gld(n+NST)
    def ld():
        q=pk if pk else pg
        if q: y=q.pop(0); items.append(("l",y[0],y[1])); return 1
        return 0
    owr=lambda g: ["ds_write_b128 v%d, %s offset:%d" % (251+g, r4(O(g)+4*q), q*1024) for q in range(4)]
    U0=E("U0",12)
    for u in range(64):
        t,g=divmod(u,4); tn,gn=divmod(u+1,4); tp_,gp=divmod(u-1,4)
        b=u%2; s0=S(b); s1=S(1-b)
        MS=[("%s %s, %s, %s, 0" % (MF, r16(s1), r4(KV(tn%4,0)), r4(Q(gn,0))), [("kv",tn,0)]),
           ("%s %s, %s, %s, %s" % (MF, r16(s1), r4(KV(tn%4,1)), r4(Q(gn,1)), r16(s1)), [("kv",tn,1)])] if u<63 else []
        MP=[("%s %s, %s, %s, %s" % (MF, r16(O(gp)), r4(KV(tp_%4,2)), r4(P(1-b)), r16(O(gp)) if tp_ else "0"), [("kv",tp_,2)]),
           ("%s %s, %s, %s, %s" % (MF, r16(O(gp)), r4(KV(tp_%4,3)), r4(P(1-b)+4), r16(O(gp))), [("kv",tp_,3)])] if u else []
        tgt=0 if u<U0 else (4*NL*(u-U0+1)+(63-U0))//(64-U0)
        ng=tgt-gi
        order={0:MS+MP, 1:MS+["G"]+MP, 2:MS[:1]+["G"]+MS[1:]+MP[:1]+["G"]+MP[1:]}[ng]
        e=lambda j: ("v_exp_f32 v%d, v%d" % (s0+j,s0+j),8)
        c=lambda j: ("v_cvt_pk_bf16_f32 v%d, v%d, v%d" % (P(b)+j,s0+2*j,s0+2*j+1),4)
        va=[e(0),e(1)]
        for j in range(6): va+=[e(2*j+2),c(j),e(2*j+3)]
        va+=[e(14),e(15),c(6),c(7)]
        if g==1 and t+3<19: pk+=kvl(t+3)
        if u==E("WU",54): pk+=wl
        if u==E("XU",42): pk+=xl
        if u==E("TO",99): pk+=[("buffer_load_dword v13, v7, s[32:35], s74 offen",("x",9))]
        if u==62: pd+=[None,None]+owr(0)
        if u==63: pd+=owr(1)
        n=len(order); acc=0; k=0; nl=0
        for i,m in enumerate(order):
            if m=="G": G()
            else: items.append(("m",m[0],m[1]))
            if (nl<MAXL and u>=E("GD",0)) or pk: nl+=ld()
            while k<len(va) and (acc+va[k][1]/2<=160*(i+1)/n or i==n-1):
                items.append(("v",va[k][0],None)); acc+=va[k][1]; k+=1
                if pd and k%3==0:
                    y=pd.pop(0)
                    if y: items.append(("v",y,None))
    def I(x):
        for l in x.split("\n"):
            l=l.strip()
            if l=="G": G(); ld()
            elif l.startswith("buffer_"): items.append(("l",l,("o",len(items))))
            else: items.append(("v",l,None))
    items.append(("s",2,None))
    items.append(("m","%s %s, %s, %s, %s" % (MF, r16(O(3)), r4(KV(3,2)), r4(P(1)), r16(O(3))),[]))
    for y in pd+owr(2)[:2]: I(y)
    items.append(("m","%s %s, %s, %s, %s" % (MF, r16(O(3)), r4(KV(3,3)), r4(P(1)+4), r16(O(3))),[]))
    WO=lambda k,ct: r4(160+8*k+4*ct) if k<6 else a4(176+8*(k-6)+4*ct)
    for y in owr(2)[2:]+["G","G"]: I(y)
    I("""v_add_f32 v8, v%d, v%d
    v_add_f32 v9, v%d, v%d
    v_add_f32 v8, v8, v9
    v_cmp_nge_f32 vcc, s22, v8
    v_mov_b32 v10, %d
    s_nop 0
    v_mov_b32 v8, vcc_hi
    ds_write_b32 v3, v8""" % (O(0)+12,O(1)+12,O(2)+12,O(3)+12,FL))
    for q in range(2,T1): I("G")
    I("s_waitcnt lgkmcnt(0)\ns_barrier")
    rq=[(g,3) for g in range(3)]+[(g,q) for q in range(3) for g in range(3)]
    for n_,(g,q) in enumerate(rq): I("ds_read_b128 %s, v254 offset:%d" % (r4(O(g)+4*q), g*4096+q*1024)+("\nG" if n_%2 and n_//2<T2 else ""))
    I("ds_read_b128 v[12:15], v10")
    for q in range(6,T2): I("G")
    o3=O(3); L=[]
    for n_,q in enumerate((3,0,1,2)):
        L.append("s_waitcnt lgkmcnt(%d)" % (10-3*n_))
        for j in range(4*q,4*q+4): L.append("v_add_f32 v%d, v%d, v%d" % (O(0)+j,O(0)+j,O(1)+j))
        for j in range(4*q,4*q+4): L.append("v_add_f32 v%d, v%d, v%d" % (o3+j,o3+j,O(2)+j))
        for j in range(4*q,4*q+4): L.append("v_add_f32 v%d, v%d, v%d" % (o3+j,o3+j,O(0)+j))
        if n_==0: L.append("v_mov_b32 v9, v%d\nv_mov_b32 v11, v%d" % (o3+12,o3+12))
        if n_==1: L.append("v_permlane32_swap_b32 v9, v11")
        if n_==2: L.append("v_rcp_f32 v10, v11")
    L.append("s_waitcnt lgkmcnt(0)\nv_or_b32 v12, v12, v13\nv_or3_b32 v12, v12, v14, v15")
    for j in range(16): L.append("v_mul_f32 v%d, v%d, v10" % (o3+j,o3+j))
    L.append("v_readfirstlane_b32 s63, v12")
    for j in range(8): L.append("v_cvt_pk_bf16_f32 v%d, v%d, v%d" % (48+j,o3+2*j,o3+2*j+1))
    for j in (0,3,4,7): L.append("v_min_u32 v%d, s23, v%d" % (48+j,48+j))
    L.append("s_cmp_lg_u32 s63, 0\ns_cselect_b32 s63, 1, 0\ns_cmp_gt_u32 s63, s60\ns_cbranch_scc1 k2_fb")
    for j,x in enumerate(L): I(("G\n" if T3 and j%T3==1 else "")+x)
    I("buffer_store_dwordx4 v[48:51], v255, s[40:43], s75 offen sc1\nbuffer_store_dwordx4 v[52:55], v255, s[40:43], s75 offen offset:1024 sc1".replace(" sc1","" if os.environ.get("LOC") else " sc1"))
    I("s_cmp_ge_u32 s5, 7\ns_cbranch_scc1 k2_fin")
    items.append(("s",3,None))
    OFR=lambda k,tok: (112+8*k if k<6 else 208+8*(k-6))+4*tok
    print("G done at publish", gi, "pending loads", len(pg), file=sys.stderr)
    if E("XU",42)>63: pg+=xl
    for q in range(GS): I("G")
    assert not pg and gi>=4*(28-NST)
    SG=E("SG",0)
    olds=["buffer_load_dwordx4 %s, v%d, s[40:43], s%d offen offset:%d sc1" % (r4(OFR(k,tok)), VO[k//4], 76+tok, (k%4)*1024) for k in range(8) for tok in range(2)]
    if SG:
        items.append(("m","s_nop 0",[("g",27,3)]))
        for w in range(4):
            items.append(("v","s_cmp_lg_u32 s3, %d\ns_cbranch_scc1 k2_sg%d\n%s\nk2_sg%d:" % (w,w,"\n".join(olds),w),None))
            if w<3:
                for q in range(SG): I("G")
    else:
        for x in olds: I(x)
    while gi<112: I("G")
    log=[("kv",t,j) for t in range(3) for j in range(4)]
    waits={}
    for n,(k,x,t) in enumerate(items):
        if k=="l": log.append(t)
        elif k=="m" and t: waits[n]=min(len(log)-1-log.index(z) for z in t)
    stamp(A,1)
    cur=10
    for n,(k,x,t) in enumerate(items):
        if k=="s": stamp(A,x); continue
        if k=="m" and n in waits and waits[n]<cur:
            w_=waits[n]; nl=0
            for n2 in range(n+1,len(items)):
                if items[n2][0]=="l": nl+=1
                if n2 in waits and waits[n2]-nl<w_:
                    if waits[n2]-nl<WFL: break
                    w_=waits[n2]-nl
            w_=min(w_,63)
            A("s_waitcnt vmcnt(%d)" % w_); cur=w_
        if k=="l": cur+=1
        A(x)
    A("s_nop 15\ns_branch k2_poll2")
    A.label("k2_poll")
    for k in range(8):
        for tok in range(2): A("buffer_load_dwordx4 %s, v%d, s[40:43], s%d offen offset:%d sc1" % (r4(OFR(k,tok)), VO[k//4], 76+tok, (k%4)*1024))
    A.label("k2_poll2")
    A("v_mov_b32 v9, 0")
    for k in range(8):
        A("s_waitcnt vmcnt(%d)" % (14-2*k))
        for tau in range(4):
            ct,tok=divmod(tau,2)
            A("%s %s, %s, %s, %s" % (MF, a16(192+16*tau), WO(k,ct), r4(OFR(k,tok)), a16(192+16*tau) if k else a16(16*tau)))
            if tau<2: A("v_max3_u32 v9, v9, v%d, v%d" % (OFR(k,tau), OFR(k,tau)+3))
    A("""v_cmp_eq_u32 vcc, -1, v9
    s_add_u32 s80, s80, 1
    s_cmp_gt_u32 s80, 0x40000
    s_cbranch_scc1 k2_go
    s_nop 1
    s_cbranch_vccnz k2_poll""")
    A.label("k2_go")
    if not os.environ.get("IT"): stamp(A,4)
    if os.environ.get("TLP")=="3": stamp_rt(A,7)
    A("s_nop 7")
    for tau in range(3):
        for q in range(4): A("ds_write_b128 v%d, %s offset:%d" % (251+tau, a4(192+16*tau+4*q), EX2+q*1024))
    for j in range(16): A("v_accvgpr_read_b32 v%d, a%d" % (o3+j, 240+j))
    for j in range(8): A("v_lshlrev_b32 v%d, 16, v%d\nv_and_b32 v%d, s72, v%d" % (224+2*j,240+j,225+2*j,240+j))
    A("s_nop 0")
    for sp in range(2):
        for i in range(4): A("v_permlane32_swap_b32 v%d, v%d" % (224+8*sp+i, 224+8*sp+4+i))
    pa=lambda d,b_: A("v_pk_add_f32 v[%d:%d], v[%d:%d], v[%d:%d]" % (d,d+1,d,d+1,b_,b_+1))
    for j in range(0,16,2): pa(o3+j,224+j)
    A("s_waitcnt lgkmcnt(0)\ns_barrier")
    for q in range(4):
        for g in range(3): A("ds_read_b128 %s, v254 offset:%d" % (r4(O(g)+4*q), EX2+g*4096+q*1024))
    for q in range(4):
        A("s_waitcnt lgkmcnt(%d)" % (9-3*q))
        for j in (4*q,4*q+2): pa(O(0)+j,O(1)+j)
        for j in (4*q,4*q+2): pa(o3+j,O(2)+j)
        for j in (4*q,4*q+2): pa(o3+j,O(0)+j)
    for j in range(8): A("v_cvt_pk_bf16_f32 v%d, v%d, v%d" % (56+j,o3+2*j,o3+2*j+1))
    A("s_nop 0")
    for sp in range(2):
        for i in range(2): A("v_permlane32_swap_b32 v%d, v%d" % (56+4*sp+i, 56+4*sp+2+i))
    if not os.environ.get("IT"): stamp(A,5)
    A("buffer_store_dwordx4 v[56:59], v7, s[32:35], s74 offen%s\nbuffer_store_dwordx4 v[60:63], v7, s[32:35], s74 offen offset:32%s" % (OSC,OSC))
    A.label("k2_fin")
    stamp_out(A,7,kidx=1)
    A.label("k2_done")
    A("s_endpgm")
    A.label("k2_fb")
    A("s_mov_b32 s60, 1\ns_waitcnt vmcnt(0) lgkmcnt(0)")
    zero_mslots()
    A("s_mov_b32 s48, s46\ns_mov_b32 s49, 0")
    for g in range(4): A("v_mov_b32 v%d, 0xff800000" % M_(g))
    A.label("k2_fb_loop")
    A("buffer_load_dwordx4 %s, v2, s[40:43], s48 offen\nbuffer_load_dwordx4 %s, v2, s[40:43], s48 offen offset:1024\ns_add_u32 s48, s48, 4096\ns_waitcnt vmcnt(0)" % (r4(KV(3,0)), r4(KV(3,1))))
    qk_all()
    A("s_nop 5")
    for g in range(4): max16(M_(g), T(g), False)
    A("s_add_u32 s49, s49, 1\ns_cmp_lt_u32 s49, 16\ns_cbranch_scc1 k2_fb_loop")
    xhalf_all()
    A("v_lshlrev_b32 v251, 2, v0\ns_lshl_b32 s62, s3, 10")
    for g in range(4):
        A("s_xor_b32 s61, s6, %d\ns_lshl_b32 s61, s61, 8\ns_add_u32 s61, s61, %d\nv_add_u32 v%d, s61, v251\nv_add_u32 v252, s62, v%d\nds_write_b32 v252, v%d" % (g, MX, 12+g, 12+g, M_(g)))
    A("s_waitcnt lgkmcnt(0)\ns_barrier")
    for g in range(4):
        for w in range(4): A("ds_read_b32 v%d, v%d offset:%d" % (112+4*g+w, 12+g, w*1024))
        A("s_waitcnt lgkmcnt(0)")
        A("v_max3_f32 v%d, v%d, v%d, v%d\nv_max_f32 v%d, v%d, v%d" % (M_(g),112+4*g,113+4*g,114+4*g,M_(g),M_(g),115+4*g))
    patch_all("0")
    A.label("k2_last")
    A("s_branch k2_restart")
    return kernel_desc(name, 512, 102, 256)
```

```python
from asmlib import *
QS_OFF=0; KV_OFF=0x200000; WF_OFF=0x240000; OF_OFF=0x440000; WO_OFF=0x640000; HF_OFF=int(__import__("os").environ.get("HFO","0x6C0000"),0); WS_SIZE=0x1100000
LOG2E=1.4426950408889634
import struct, os
def fbits(x): return struct.unpack("<I", struct.pack("<f", x))[0]
K1_LDS=155648
RDS=int(os.environ.get("RDS","1"))
SC=os.environ.get("SC"," sc1")
MF="v_mfma_f32_32x32x16_bf16"
def r4(i): return "v[%d:%d]" % (i,i+3)
def r16(i): return "v[%d:%d]" % (i,i+15)
def interleave(main, fill):
    out=[]; n=len(main); k=0
    for i,m in enumerate(main):
        out.append(m)
        tgt=(len(fill)*(i+1)+n-1)//n
        while k<tgt: out.append(fill[k]); k+=1
    return out
def merge(a, b):
    out=[]; i=j=0
    while i<len(a) or j<len(b):
        if j>=len(b) or (i<len(a) and i*len(b)<=j*len(a)): out.append(a[i]); i+=1
        else: out.append(b[j]); j+=1
    return out
def gen_k1(A, name="k1_kernel", sentinel=False):
    WB=49152; TS=147456
    kernel_head(A, name)
    A("s_cmp_ge_u32 s2, 256\ns_cbranch_scc1 k1_done")
    stamp(A,0); stamp_rt(A,7)
    A("""s_load_dwordx8 s[8:15], s[0:1], 0
    s_load_dwordx4 s[20:23], s[0:1], 48
    s_load_dwordx2 s[16:17], s[0:1], 32
    s_load_dwordx2 s[18:19], s[0:1], 64
    s_load_dwordx2 s[24:25], s[0:1], 88
    s_load_dwordx2 s[80:81], s[0:1], 72
    v_readfirstlane_b32 s3, v0
    v_and_b32 v0, 63, v0
    s_and_b32 s4, s2, 7
    s_lshr_b32 s5, s2, 3
    s_lshr_b32 s3, s3, 6
    s_and_b32 s6, s4, 1
    s_lshl_b32 s6, s6, 3
    s_and_b32 s7, s5, 7
    s_add_u32 s6, s6, s7
%s
    s_lshr_b32 s44, s3, 2
    s_and_b32 s45, s3, 3
    s_and_b32 s46, s3, 1
    s_lshr_b32 s47, s3, 1
    s_lshl_b32 s48, s46, 1
    s_xor_b32 s48, s47, s48
    v_lshrrev_b32 v1, 4, v0
    v_bfe_u32 v2, v0, 2, 2
    v_and_b32 v3, 3, v0
    v_xor_b32 v4, v2, v1
    v_lshrrev_b32 v5, 5, v0
    v_and_b32 v6, 31, v0
    s_lshl_b32 s49, s3, 4
    v_lshrrev_b32 v7, 3, v0
    v_add_u32 v7, s49, v7
    v_mul_u32_u24 v8, 896, v7
    v_and_b32 v10, 7, v0
    v_xor_b32 v11, v10, v1
    v_lshl_add_u32 v8, v11, 4, v8
    v_xor_b32 v9, 64, v8
    v_add_u32 v9, 7168, v9""" % ("""s_lshr_b32 s7, s4, 1
    s_lshl_b32 s7, s7, 2
    s_lshr_b32 s5, s5, 3
    s_add_u32 s7, s7, s5""" if os.environ.get("SP","1")=="0" else """s_lshr_b32 s44, s4, 2
    s_bfe_u32 s45, s4, 0x10001
    s_mul_i32 s46, s44, 7
    s_lshl_b32 s47, s45, 2
    s_add_u32 s47, s47, s46
    s_add_u32 s46, s46, 3
    s_add_u32 s44, s44, 14
    s_lshr_b32 s7, s7, 2
    s_cmp_eq_u32 s7, s45
    s_cselect_b32 s46, s46, s44
    s_lshr_b32 s5, s5, 3
    s_add_u32 s47, s47, s5
    s_sub_u32 s47, s47, 1
    s_cmp_eq_u32 s5, 0
    s_cselect_b32 s7, s46, s47"""))
    A("""s_lshl_b32 s50, s7, 8
    s_sub_u32 s51, s7, 14
    s_lshl_b32 s51, s51, 9
    s_lshl_b32 s52, s44, 8
    s_add_u32 s51, s51, s52
    s_cmp_lt_u32 s7, 14
    s_movk_i32 s53, 896
    s_cselect_b32 s53, 3584, s53
    s_cselect_b32 s50, s50, s51
    s_lshl_b32 s57, s7, 1
    s_add_u32 s57, s57, s44
    s_cmp_eq_u32 s57, 31
    s_cselect_b32 s57, 2, 100
    v_mov_b32 v13, s53
    v_lshlrev_b32 v20, 6, v4
    v_add_u32 v20, s50, v20
    v_cmp_le_u32 vcc, s57, v4
    v_mov_b32 v17, 0
    v_mov_b32 v19, 0
    v_mov_b32 v21, 56
    v_cndmask_b32 v13, v13, v21, vcc
    v_cndmask_b32 v20, v20, v17, vcc
    s_lshl_b32 s58, s45, 4
    v_add_u32 v21, s58, v1
    v_mul_lo_u32 v21, v21, v13
    v_add_u32 v20, v20, v21
    v_lshl_add_u32 v16, v3, 4, v20
    v_cmp_eq_u32 s[70:71], s57, v4
    s_mul_i32 s59, s6, %d
    s_lshl_b32 s60, s3, 11
    s_mul_i32 s61, s45, 24576
    s_lshl_b32 s62, s44, 12
    s_add_u32 s61, s61, s62
    s_add_u32 s61, s61, %d
    s_waitcnt lgkmcnt(0)
    s_cmp_eq_u32 s44, 0
    s_cselect_b32 s32, s20, s22
    s_cselect_b32 s33, s21, s23
    s_cmp_lt_u32 s7, 14
    s_cselect_b32 s32, s32, s10
    s_cselect_b32 s33, s33, s11
    v_mov_b32 v14, s32
    v_mov_b32 v15, s33
    v_mov_b32 v21, s14
    v_mov_b32 v22, s15
    v_cndmask_b32 v14, v14, v21, vcc
    v_cndmask_b32 v15, v15, v22, vcc
    v_mov_b32 v21, s12
    v_mov_b32 v22, s13
    v_cndmask_b32 v14, v14, v21, s[70:71]
    v_cndmask_b32 v15, v15, v22, s[70:71]
    v_lshl_add_u64 v[14:15], v[16:17], 0, v[14:15]
    v_lshlrev_b32 v16, 2, v13
    v_mul_u32_u24 v18, 52, v13""" % (128*896, WB))
    srd(A, 28, 8, 2048*896)
    def dma(c):
        st=c%3; L=[]
        for p in range(4):
            L.append("s_add_u32 m0, s61, %d\ns_nop 0\nglobal_load_lds_dwordx4 v[14:15], off\nv_lshl_add_u64 v[14:15], v[%d:%d], 0, v[14:15]" % (st*8192+p*1024, 18 if p==3 else 16, 19 if p==3 else 17))
            if p%2==0:
                e=p//2
                L.append("s_add_u32 m0, s60, %d\ns_nop 0\nbuffer_load_dwordx4 v%d, s[28:31], s59 offen lds%s" % (st*16384+e*1024, 8+e, "\ns_add_u32 s59, s59, 128" if e else ""))
        return L
    VL=[]
    def emit(x, tag):
        A(x)
        for l in x.split("\n"):
            if l.strip().startswith(("buffer_","global_")): VL.append(tag)
    def vw(tag): return len(VL)-1-max(i for i,t in enumerate(VL) if t==tag)
    C1=int(os.environ.get("C1","1"))
    for c in range(1 if C1 else 2):
        for x in dma(c): emit(x,c)
    if C1 in (4,5):
        A("s_barrier")
        for x in dma(1): emit(x,1)
    PF=int(os.environ.get("PF","0"))
    pfa="""s_and_b32 s62, s6, 7
        s_mul_i32 s62, s62, 40
        s_mul_i32 s63, s45, 10
        s_add_u32 s62, s62, s63
        s_add_u32 s62, s62, 128
        v_lshrrev_b32 v34, 1, v0
        v_add_u32 v34, s62, v34
        v_mul_lo_u32 v34, v34, s53
        v_and_b32 v35, 1, v0
        v_lshl_add_u32 v34, v35, 7, v34
        v_add_u32 v34, s50, v34
        s_and_b32 s62, s7, 3
        s_lshl_b32 s62, s62, 3
        s_add_u32 s62, s62, s3
        s_mul_i32 s62, s62, 3584
        s_mul_i32 s63, s6, %d
        s_add_u32 s34, s62, s63
        v_mul_u32_u24 v35, 52, v0
        v_lshrrev_b32 v35, 8, v35
        v_lshlrev_b32 v35, 8, v35
        v_lshl_add_u32 v35, v0, 7, v35
        s_cmp_eq_u32 s57, 2
        s_cselect_b32 s35, 0x55555, 0xfffff""" % (128*896)
    pfx="""s_mov_b32 exec_lo, s35
        s_mov_b32 exec_hi, 0
        global_load_dword v62, v34, s[32:33]
        s_mov_b32 exec_lo, 0xfffff
        buffer_load_dword v63, v35, s[28:31], s34 offen offset:256
        s_mov_b64 exec, -1"""
    if PF: A(pfa.replace("s_cselect_b32 s35, 0x55555, 0xfffff","s_mov_b32 s35, 0xfffff\ns_cselect_b32 s35, 0x55555, s35"))
    if PF==1: emit(pfx,"pf")
    stamp(A,1)
    srd(A, 40, 24, WS_SIZE)
    A("""s_lshl_b32 s63, s2, 3
    s_add_u32 s63, s63, s3
    s_mul_i32 s64, s63, 4682
    s_lshr_b32 s64, s64, 16
    s_mul_i32 s65, s64, 14
    s_sub_u32 s65, s63, s65
    s_mul_i32 s54, s64, 1821
    s_lshr_b32 s54, s54, 16
    s_mul_i32 s55, s54, 36
    s_sub_u32 s55, s64, s55
    s_lshr_b32 s69, s65, 1
    s_lshl_b32 s69, s69, 2
    s_add_u32 s69, s69, s54
    s_lshl_b32 s69, s69, 3
    s_add_u32 s69, s69, s55
    s_lshl_b32 s69, s69, 1
    s_lshr_b32 s68, s54, 1
    s_xor_b32 s68, s68, s65
    s_and_b32 s68, s68, 1
    s_xor_b32 s68, s68, 1
    s_add_u32 s69, s69, s68
    s_lshl_b32 s69, s69, 10
    s_add_u32 s69, s69, %d
    s_mul_i32 s66, s54, 28
    s_add_u32 s66, s66, s55
    s_lshl_b32 s66, s66, 4
    s_sub_u32 s56, s55, 28
    s_lshr_b32 s58, s56, 1
    s_lshl_b32 s54, s54, 2
    s_add_u32 s58, s58, s54
    s_mul_i32 s58, s58, 28
    s_and_b32 s56, s56, 1
    s_lshl_b32 s54, s56, 4
    s_add_u32 s58, s58, s54
    s_lshl_b32 s56, s56, 4
    s_sub_u32 s56, 64, s56
    s_cmp_lt_u32 s55, 28
    s_cselect_b32 s36, s18, s16
    s_cselect_b32 s37, s19, s17
    s_mov_b32 s38, %d
    s_cselect_b32 s38, %d, s38
    s_cselect_b32 s66, s66, s58
    s_cselect_b32 s56, 64, s56
    s_and_b32 s37, s37, 0xffff
    s_mov_b32 s39, 0x00020000
    s_mul_i32 s66, s66, 896
    s_lshl_b32 s67, s65, 6
    s_add_u32 s66, s66, s67
    s_mul_i32 s67, s65, 144
    s_add_u32 s67, s67, s64
    s_lshl_b32 s67, s67, 10
    s_add_u32 s67, s67, %d
    s_cmp_lt_u32 s55, 28
    s_cselect_b32 s67, s67, s69
    s_cmp_lt_u32 s63, 2016
    s_cselect_b32 s67, s67, 0x7fff0000
    v_cmp_gt_u32 vcc, s56, v0
    v_lshrrev_b32 v21, 2, v0
    v_mul_u32_u24 v21, 896, v21
    v_lshl_add_u32 v21, v3, 4, v21
    v_mov_b32 v22, 0x7fff0000
    v_cndmask_b32 v21, v22, v21, vcc
    s_lshl_b32 s68, s3, 10
    s_add_u32 s68, s68, %d
    v_lshlrev_b32 v49, 4, v0
    v_mov_b32 v23, v21""" % (WO_OFF-56*1024, 448*896, 1792*896, WF_OFF, TS))
    tj="s_mov_b32 m0, s68\ns_nop 0\nbuffer_load_dwordx4 v23, s[36:39], s66 offen lds"
    if not C1: emit(tj,"T")
    ES=int(os.environ.get("ES","1")); E1=int(os.environ.get("E1","23")); E2=int(os.environ.get("E2","24"))
    A("""s_lshl_b32 s26, s63, 10
    s_add_u32 s26, s26, %d
    v_mov_b32 v248, -1
    v_mov_b32 v249, -1
    v_mov_b32 v250, -1
    v_mov_b32 v251, -1""" % (OF_OFF))
    st1="buffer_store_dwordx4 v[248:251], v49, s[40:43], s26 offen%s" % SC
    st2="buffer_store_dwordx4 v[228:231], v49, s[40:43], s67 offen%s" % SC
    if not ES: emit(st1,"s")
    C3=int(os.environ.get("C3","0"))
    if C3==1:
        for x in dma(2): emit(x,2)
    TW=int(os.environ.get("TW","1")); TP=int(os.environ.get("TP","19"))
    srd(A, 76, 80, 2048*896)
    A("s_mul_i32 s27, s3, %d\nv_lshlrev_b32 v62, 16, v0" % (28*65536))
    tw="""s_mov_b32 exec_lo, 0x0fffffff
    s_mov_b32 exec_hi, 0
    buffer_load_dword v63, v62, s[40:43], s27 offen
    buffer_load_dword v63, v62, s[76:79], 0 offen
    s_mov_b64 exec, -1"""
    A("""v_bfe_u32 v20, v0, 1, 3
    v_xor_b32 v20, v20, v5
    v_lshlrev_b32 v20, 4, v20
    v_lshl_add_u32 v20, v6, 7, v20
    s_lshl_b32 s62, s46, 13
    v_add_u32 v20, s62, v20
    v_lshl_add_u32 v21, v5, 3, v2
    v_lshlrev_b32 v21, 8, v21
    v_xor_b32 v22, s47, v2
    v_lshl_add_u32 v21, v22, 6, v21
    v_and_b32 v22, 1, v1
    v_lshlrev_b32 v22, 5, v22
    v_lshl_add_u32 v22, v3, 3, v22
    v_add_u32 v21, v21, v22
    v_lshl_add_u32 v32, v5, 2, v2
    v_lshl_add_u32 v32, v32, 6, v22
    v_add_u32 v48, s68, v32""")
    for i in range(4):
        A("""s_xor_b32 s62, s48, %d
        s_lshl_b32 s69, s62, 5
        v_xor_b32 v%d, s69, v20
        s_mul_i32 s62, s62, 24576
        s_add_u32 s62, s62, %d
        v_add_u32 v%d, s62, v21""" % (i, 24+i, WB, 28+i))
    PK=int(os.environ.get("PK","0"))
    for r in (range(232,240) if PK else range(36,40)): A("v_mov_b32 v%d, 0" % r)
    A("""v_mov_b32 v33, 0x3f803f80
    v_cmp_eq_u32 vcc, 0, v6
    v_cmp_eq_u32 s[70:71], 20, v6
    s_mov_b32 s72, 0xffff0000
    s_mov_b32 s73, 0x07060302
    s_or_b64 vcc, vcc, s[70:71]
    s_mov_b32 s74, 0x%x
    v_cndmask_b32 v168, 0, v33, vcc
    v_mov_b32 v169, v168
    v_mov_b32 v170, v168
    v_mov_b32 v171, v168
    s_lshl_b32 s62, s46, 12
    s_add_u32 s62, s62, 16384
    v_lshlrev_b32 v44, 6, v6
    v_add_u32 v44, s62, v44
    s_lshl_b32 s69, s47, 4
    v_lshl_add_u32 v45, v5, 3, v44
    v_add_u32 v45, s69, v45
    s_lshl_b32 s62, s47, 9
    s_add_u32 s62, s62, 24576
    v_lshlrev_b32 v46, 2, v6
    v_add_u32 v46, s62, v46
    s_lshl_b32 s69, s46, 7
    v_add_u32 v47, s69, v46
    v_cmp_gt_u32 vcc, 32, v0
    s_lshl_b32 s75, s6, 2
    s_lshl_b32 s62, s46, 1
    s_add_u32 s75, s75, s62
    v_mov_b32 v190, 0
    v_mov_b32 v191, 0
    v_mov_b32 v194, 0
    v_mov_b32 v195, 0""" % fbits(1.0/448))
    D2=int(os.environ.get("D2","0"))
    def bb(P): return [128,144,232][P%3] if D2 else 128+16*(P%2)
    def xr(P, tok): return ((172+8*D2*((P//4)%2)) if P%4==0 else bb(P))+4*tok
    def wr(P, hf): return bb(P)+8+4*hf
    def reads(P):
        c,i=divmod(P,4); st=c%3; L=[]
        for hf in range(2):
            for z in range(2):
                L.append("ds_read_b64_tr_b16 v[%d:%d], v%d offset:%d" % (wr(P,hf)+2*z, wr(P,hf)+2*z+1, 28+i, st*8192+hf*4096+z*1024))
            L.append("ds_read_b128 %s, v%d offset:%d" % (r4(xr(P,hf)), 24+i, st*16384+hf*4096))
        return L
    so=[]
    for tok in range(2):
        for r in range(4):
            src=172+4*tok+r; t0=40+2*(r%2); t1=t0+1
            if PK:
                sa=232+4*tok; tt="v[%d:%d]" % (t0,t1)
                so+=["v_and_b32 v%d, s72, v%d" % (t0,src), "v_lshlrev_b32 v%d, 16, v%d" % (t1,src),
                    "v_pk_add_f32 v[%d:%d], v[%d:%d], %s" % (sa,sa+1,sa,sa+1,tt), "v_pk_fma_f32 v[%d:%d], %s, %s, v[%d:%d]" % (sa+2,sa+3,tt,tt,sa+2,sa+3)]
                continue
            so+=["v_and_b32 v%d, s72, v%d" % (t0,src), "v_lshlrev_b32 v%d, 16, v%d" % (t1,src),
                "v_add_f32 v%d, v%d, v%d" % (36+2*tok,36+2*tok,t0), "v_fmac_f32 v%d, v%d, v%d" % (37+2*tok,t0,t0),
                "v_add_f32 v%d, v%d, v%d" % (36+2*tok,36+2*tok,t1), "v_fmac_f32 v%d, v%d, v%d" % (37+2*tok,t1,t1)]
    MS=int(os.environ.get("MS","0"))
    if MS:
        A("v_mov_b32 v34, v33\nv_mov_b32 v35, v33\nv_cmp_eq_u32 s[76:77], 1, v3\nv_cmp_eq_u32 s[78:79], 2, v3\nv_cmp_eq_u32 s[34:35], 3, v3")
        def ms(first):
            L=[]
            for z in range(2):
                for tok in range(2):
                    src="v[%d:%d]" % (172+4*tok+2*z,173+4*tok+2*z)
                    for kind in range(2):
                        acc=r4(232+8*tok+4*kind)
                        L.append("v_mfma_f32_4x4x4_16b_bf16 %s, %s, %s, %s" % (acc, src if kind else "v[34:35]", src, "0" if first and z==0 else acc))
            return L
        msel=[]
        for tok in range(2):
            q=236+8*tok
            msel+=["v_mov_b32 v%d, v%d" % (36+2*tok, 232+8*tok), "v_cndmask_b32 v%d, v%d, v%d, s[76:77]" % (37+2*tok,q,q+1),
                   "v_cndmask_b32 v%d, v%d, v%d, s[78:79]" % (37+2*tok,37+2*tok,q+2), "v_cndmask_b32 v%d, v%d, v%d, s[34:35]" % (37+2*tok,37+2*tok,q+3)]
    fm=[]
    for st in (8,4,2):
        for tok in range(2):
            b=196+16*tok
            for j in range(st): fm.append("v_add_f32 v%d, v%d, v%d" % (b+j,b+j,b+j+st))
    seq="""v_mul_f32 v{s}, s74, v{s}
        v_mul_f32 v{q}, s74, v{q}
        v_fma_f32 v{q}, -v{s}, v{s}, v{q}
        v_max_f32 v{q}, 0, v{q}
        v_cvt_pk_bf16_f32 v{f}, -v{s}, -v{s}
        v_cvt_pk_bf16_f32 v{q}, v{q}, v{q}
        v_and_b32 v{q}, s72, v{q}
        v_add_f32 v{q}, 0x{eps:x}, v{q}
        v_cvt_pk_bf16_f32 v{q}, v{q}, v{q}
        v_and_b32 v{q}, s72, v{q}
        v_sqrt_f32 v{q}, v{q}
        v_mov_b32 v{f1}, v{f}
        v_cvt_pk_bf16_f32 v{q}, v{q}, v{q}
        v_and_b32 v{d}, s72, v{q}
        v_rcp_f32 v{r}, v{d}
        v_mov_b32 v{f2}, v{f}
        v_mov_b32 v{f3}, v{f}"""
    s0,s1=[seq.format(s=196+16*tok,q=197+16*tok,f=180+4*tok,f1=181+4*tok,f2=182+4*tok,f3=183+4*tok,d=54+tok,r=56+tok,eps=fbits(1e-5)).split("\n") for tok in range(2)]
    for a_,b_ in zip(s0,s1): fm+=[a_,b_]
    for hf in range(2):
        fm+="""v_add_f32 v{c}, v{c}, v{c1}
        v_cndmask_b32 v{c}, 0, v{c}, vcc
        v_and_b32 v58, s72, v{c}
        v_sub_f32 v59, v{c}, v58
        v_and_b32 v60, s72, v59
        v_sub_f32 v61, v59, v60
        v_perm_b32 v{f}, v60, v58, s73
        v_lshrrev_b32 v{f1}, 16, v61""".format(c=50+2*hf,c1=51+2*hf,f=188+4*hf,f1=189+4*hf).split("\n")
    if C1 in (1,3):
        for x in dma(1): emit(x,1)
        if C1==1: emit(tj,"T")
    if C1==5:
        for x in dma(2): emit(x,2)
        C3=1
    A("s_waitcnt vmcnt(%d)\ns_barrier" % vw(0))
    stamp(A,2)
    for x in reads(0): A(x)
    if C1==2:
        for x in dma(1): emit(x,1)
    if C1>=2: emit(tj,"T")
    if D2:
        for x in reads(1): A(x)
    if PF==2: emit(pfx,"pf")
    pend=[(x,2) for x in dma(2)] if not C3 else []
    if os.environ.get("PR"): A("s_cmp_eq_u32 s44, 0\ns_cbranch_scc1 k1_pr\ns_setprio 1\nk1_pr:")
    for P in range(28):
        c,i=divmod(P,4)
        if os.environ.get("FS"):
            if P in (4,8,12,20): stamp(A,{4:1,8:3,12:4,20:5}[P])
        elif P==12: stamp(A,3)
        rd=reads(P+1+D2) if P+1+D2<28 else []
        va=[]
        if i==3-D2 and c<6:
            assert not pend
            A("s_waitcnt vmcnt(%d) lgkmcnt(0)\ns_barrier" % vw(c+1))
            if c+3<=6: pend=[(x,c+3) for x in dma(c+3)]
        elif P==26:
            A("""s_mov_b32 exec_hi, 0
            ds_write_b32 v47, v160
            ds_write_b32 v47, v164 offset:256
            s_mov_b32 exec_hi, -1
            ds_write_b64 v45, v[36:37]
            ds_write_b64 v45, v[38:39] offset:2048
            s_waitcnt lgkmcnt(0)
            s_barrier""")
            ex=[]
            for tok in range(2):
                for q in range(4): ex.append("ds_read_b128 %s, v44 offset:%d" % (r4(196+16*tok+4*q), tok*2048+q*16))
            ex+=["ds_read2_b32 v[50:51], v46 offset0:0 offset1:32","ds_read2_b32 v[52:53], v46 offset0:64 offset1:96"]
            rd=ex+rd
        else:
            A("s_waitcnt lgkmcnt(%d)" % (6 if D2 and P<27 else 0))
        ns=len(so)
        if c<6:
            if i<3: va=so[ns*i//3//4*4:ns*(i+1)//3//4*4] if PK else so[16*i:16*i+16]
        elif i<2:
            va=so[ns//2*i:ns//2*(i+1)]
            if PK and i==1: va=va+["v_add_f32 v%d, v%d, v%d" % (36+j,232+2*j,233+2*j) for j in range(4)]
        if MS:
            va=[]
            if c<6:
                if MS==1 and i in (2,): va=ms(c==0)[:4]
                if MS==1 and i==1: va=[]
                if MS==1 and i==0: va=[]
            m_=ms(c==0)
            if c<6: va={0:m_[:2],1:m_[2:4],2:m_[4:],3:[]}[i] if MS==1 else {0:m_[:4],1:m_[4:],2:[],3:[]}[i]
            else: va={0:m_,1:[],2:[],3:[]}[i]
            if P==25: va=["s_nop 0"]*3+msel
        if D2 and c%2:
            for r in range(172,180): va=[x.replace("v%d" % r, "v%d" % (r+8)) for x in va]
        if P==9: rd=rd+["ds_read_b64_tr_b16 v[228:229], v48","ds_read_b64_tr_b16 v[230:231], v48 offset:512"]
        if P==27: va=fm
        take=2 if i!=2 else len(pend)
        if D2: take=3 if P<2 else 2
        dm=pend[:take]; pend=pend[take:]
        if TW and P==TP: dm=dm+[(tw,"tw")]
        if ES and P==E1: dm=dm+[(st1,"s")]
        if ES and P==E2: dm=dm+[(st2,"s")]
        if PF==3 and P==2-D2: dm=dm+[(pfx,"pf")]
        mm=[]
        for hf in range(2):
            if i<2:
                mm.append("v_mfma_f32_16x16x32_bf16 %s, v[168:171], %s, %s" % (r4(160+4*hf),r4(wr(P,hf)),r4(160+4*hf) if P else "0"))
            for tok in range(2):
                acc=64+32*hf+16*tok
                mm.append("%s %s, %s, %s, %s" % (MF,r16(acc),r4(wr(P,hf)),r4(xr(P,tok)),r16(acc) if P else "0"))
        if P==25: mm=[mm[0],mm[3],mm[1],mm[2],mm[4],mm[5]]
        X=os.environ.get("X","")
        if "v" in X and P<27: va=[]
        if "c" in X: mm=[m for m in mm if "16x16" not in m]
        if "d" in X: dm=[]
        if "t" in X: rd=[r for r in rd if "tr_b16" not in r]
        if "x" in X: rd=[r for r in rd if "b128" not in r]
        n=len(mm); slots=[[] for _ in range(n)]
        nr=RDS
        for j,x in enumerate(rd): slots[min(n-1,j*nr//len(rd))].append(x)
        DP=int(os.environ.get("DP","2"))
        for j,x in enumerate(dm): slots[n-DP+(j*2)//len(dm)].append(x)
        for j,x in enumerate(va): slots[j*n//len(va)].append(x)
        for j in range(n):
            A(mm[j])
            for x in slots[j]:
                if isinstance(x,tuple): emit(*x)
                else: A(x)
    if not os.environ.get("FS"): stamp(A,4)
    A("s_nop 1" if ES else st2+"\ns_nop 0")
    for tok in range(2):
        for hf in range(2):
            acc=64+32*hf+16*tok
            A("%s %s, %s, %s, %s" % (MF,r16(acc),r4(188+4*hf),r4(180+4*tok),r16(acc)))
    A("s_cmp_ge_u32 s7, 14\ns_cbranch_scc1 k1_qkv")
    if not os.environ.get("FS"): stamp(A,5)
    A("""v_mul_f32 v58, 0x%x, v56
    v_mul_f32 v59, 0x%x, v57
    s_mul_i32 s76, s75, %d
    s_lshl_b32 s62, s7, 2
    s_add_u32 s62, s62, s47
    s_lshl_b32 s62, s62, 11
    s_add_u32 s76, s76, s62
    s_add_u32 s76, s76, %d
    s_add_u32 s77, s76, %d
    s_cmp_eq_u32 s44, 1
    s_nop 3""" % (fbits(-LOG2E), fbits(-LOG2E), 112*1024, HF_OFF, 112*1024))
    for tok in range(2):
        G=64+16*tok; U=96+16*tok
        for half in range(2):
            rs=range(8*half,8*half+8)
            PE=int(os.environ.get("PE","1"))
            p2=lambda r: "v[%d:%d]" % (r,r+1)
            if PE:
                for r in rs[::2]: A("v_pk_mul_f32 %s, %s, v[58:59] op_sel:[0,%d] op_sel_hi:[1,%d]" % (p2(G+r),p2(G+r),tok,tok))
            else:
                for r in rs: A("v_mul_f32 v%d, v%d, v%d" % (G+r,G+r,58+tok))
            for r in rs: A("v_exp_f32 v%d, v%d" % (G+r,G+r))
            if PE:
                for r in rs[::2]: A("v_pk_fma_f32 %s, %s, v[54:55], v[54:55] op_sel:[0,%d,%d] op_sel_hi:[1,%d,%d]" % (p2(G+r),p2(G+r),tok,tok,tok,tok))
            else:
                for r in rs: A("v_fma_f32 v%d, v%d, v%d, v%d" % (G+r,G+r,54+tok,54+tok))
            for r in rs: A("v_rcp_f32 v%d, v%d" % (G+r,G+r))
            if PE:
                for r in rs[::2]: A("v_pk_mul_f32 %s, %s, %s" % (p2(U+r),p2(U+r),p2(G+r)))
            else:
                for r in rs: A("v_mul_f32 v%d, v%d, v%d" % (U+r,U+r,G+r))
            o=128+8*tok+4*half
            for j in range(4): A("v_cvt_pk_bf16_f32 v%d, v%d, v%d" % (o+j,U+8*half+2*j,U+8*half+2*j+1))
            HP=int(os.environ.get("HP","0")); HY=int(os.environ.get("HY","0"))
            stx="buffer_store_dwordx4 %s, v49, s[40:43], s%d offen offset:%d" % (r4(o),76+tok,half*1024)
            if 2*tok+half>=4-HY:
                A("s_cbranch_scc1 k1_y%d\n%s%s\ns_branch k1_z%d\nk1_y%d:\n%s\nk1_z%d:" % (o,stx,SC,o,o,stx,o))
            else: A(stx+(SC if 2*tok+half<4-HP else ""))
    if os.environ.get("QS"): stamp(A,3)
    stamp_out(A,7)
    A("s_endpgm")
    A.label("k1_qkv")
    if not os.environ.get("FS"): stamp(A,5)
    qs=LOG2E*28**-0.5
    A("""s_sub_u32 s76, s7, 14
    s_lshl_b32 s76, s76, 3
    s_add_u32 s76, s76, s47
    s_mov_b32 s77, 0x%x
    s_cmp_ge_u32 s76, 10
    s_cselect_b32 s78, 1.0, s77
    s_cselect_b32 s71, -1, 0
    s_mov_b32 s70, 0
    s_cmp_eq_u32 s76, 10
    s_cselect_b32 s79, 0x3f803f80, 0
    s_cselect_b32 s80, 0x3f80, 0
    s_or_b32 s79, s79, 0x3f80
    v_mov_b32 v40, s79
    v_mov_b32 v41, s80
    v_mul_f32 v58, s77, v56
    v_mul_f32 v59, s77, v57
    v_mul_f32 v60, s78, v56
    v_mul_f32 v61, s78, v57
    s_mul_i32 s62, s46, 49152
    s_add_u32 s62, s62, %d
    v_and_b32 v42, 15, v0
    s_lshl_b32 s69, s47, 2
    v_xor_b32 v42, s69, v42
    v_lshlrev_b32 v42, 4, v42
    v_lshl_add_u32 v42, v5, 3, v42
    v_lshl_add_u32 v42, v6, 9, v42
    v_add_u32 v42, s62, v42""" % (fbits(qs), WB+8192))
    for q in range(1,4): A("v_xor_b32 v%d, %d, v42" % (32+q, 16*q))
    A("v_mov_b32 v32, v42")
    for hf in range(2):
        for tok in range(2):
            a0=64+32*hf+16*tok; o=128+16*hf+8*tok
            for j in range(0,16,2): A("v_pk_mul_f32 v[%d:%d], v[%d:%d], v[%d:%d] op_sel:[0,%d] op_sel_hi:[1,%d]" % (a0+j,a0+j+1,a0+j,a0+j+1,58+2*hf,59+2*hf,tok,tok))
            for j in range(8): A("v_cvt_pk_bf16_f32 v%d, v%d, v%d" % (o+j,a0+2*j,a0+2*j+1))
            if hf: A("v_cndmask_b32 v%d, v%d, v40, s[70:71]\nv_cndmask_b32 v%d, v%d, v41, s[70:71]" % (o+6,o+6,o+7,o+7))
            for q in range(4): A("ds_write_b64 v%d, v[%d:%d] offset:%d" % (32+q,o+2*q,o+2*q+1,tok*24576+hf*256))
    if os.environ.get("QS"): stamp(A,1)
    A("""s_mul_i32 s62, s47, 24576
    s_lshl_b32 s69, s46, 13
    s_add_u32 s62, s62, s69
    s_add_u32 s62, s62, %d
    v_xor_b32 v43, v6, v5
    v_lshlrev_b32 v43, 4, v43
    v_lshl_add_u32 v43, v5, 9, v43
    v_add_u32 v43, s62, v43
    s_lshl_b32 s62, s6, 7
    s_add_u32 s62, s62, s49
    s_mul_i32 s62, s62, 896
    s_sub_u32 s69, s7, 14
    s_lshl_b32 s69, s69, 9
    s_add_u32 s81, s62, s69
    s_cmp_eq_u32 s7, 15
    s_cselect_b32 s69, 24, 32
    v_mul_u32_u24 v44, 896, v5
    v_lshl_add_u32 v44, v6, 4, v44
    v_cmp_gt_u32 vcc, s69, v6
    v_mov_b32 v45, 0x7fff0000
    s_waitcnt lgkmcnt(0)
    s_barrier
    v_cndmask_b32 v44, v45, v44, vcc""" % (WB+8192))
    if os.environ.get("QS"): stamp(A,2)
    KS=os.environ.get("KS","")
    A("s_cmp_eq_u32 s7, 14\ns_cbranch_scc1 k1_fin")
    A("""s_lshl_b32 s77, s6, 2
    s_add_u32 s77, s77, s45
    s_lshl_b32 s77, s77, 12
    s_add_u32 s77, s77, %d
    s_mul_i32 s62, s45, 24576
    s_add_u32 s62, s62, %d
    s_cmp_eq_u32 s44, 1
    s_cbranch_scc1 k1_v
    v_and_b32 v52, 15, v0
    v_xor_b32 v52, v52, v5
    v_xor_b32 v52, 24, v52
    v_lshlrev_b32 v52, 4, v52
    v_lshl_add_u32 v52, v6, 9, v52
    v_add_u32 v52, s62, v52
    v_xor_b32 v53, 32, v52
    ds_read_b128 v[96:99], v52
    ds_read_b128 v[100:103], v53
    s_waitcnt lgkmcnt(0)
    buffer_store_dwordx4 v[96:99], v49, s[40:43], s77 offen%s
    buffer_store_dwordx4 v[100:103], v49, s[40:43], s77 offen offset:1024%s
    s_branch k1_fin""" % (KV_OFF, WB+8192, KS, KS))
    A.label("k1_v")
    A("""v_lshl_add_u32 v52, v5, 2, v2
    v_and_b32 v53, 1, v1
    v_lshlrev_b32 v53, 1, v53
    v_bfe_u32 v55, v0, 1, 1
    v_add3_u32 v53, v53, v55, 28
    v_xor_b32 v53, v53, v52
    v_lshlrev_b32 v53, 4, v53
    v_lshl_add_u32 v53, v52, 9, v53
    v_and_b32 v55, 1, v0
    v_lshl_add_u32 v53, v55, 3, v53
    v_add_u32 v52, s62, v53
    v_xor_b32 v53, 128, v52
    ds_read_b64_tr_b16 v[96:97], v52
    ds_read_b64_tr_b16 v[98:99], v53 offset:4096
    ds_read_b64_tr_b16 v[100:101], v52 offset:8192
    ds_read_b64_tr_b16 v[102:103], v53 offset:12288
    s_waitcnt lgkmcnt(0)
    buffer_store_dwordx4 v[96:99], v49, s[40:43], s77 offen offset:2048%s
    buffer_store_dwordx4 v[100:103], v49, s[40:43], s77 offen offset:3072%s""" % (KS, KS))
    A.label("k1_fin")
    for i in range(8):
        A("v_xor_b32 v45, %d, v43\nds_read_b128 %s, v45 offset:%d" % (32*i, r4(64+4*i), i*1024))
    for i in range(8):
        A("s_waitcnt lgkmcnt(%d)\nbuffer_store_dwordx4 %s, v44, s[40:43], s81 offen%s\ns_add_u32 s81, s81, 1792" % (7-i, r4(64+4*i), SC if i<int(os.environ.get("QP","0")) else ""))
    if os.environ.get("QS"): stamp(A,3)
    stamp_out(A,7)
    A.label("k1_done")
    A("s_endpgm")
    return kernel_desc(name, 252, 102)
```

```python
from asmlib import *
QS_OFF=0; KV_OFF=0x200000; WF_OFF=0x240000; OF_OFF=0x440000; WO_OFF=0x640000; HF_OFF=int(__import__("os").environ.get("HFO","0x6C0000"),0); WS_SIZE=0x1100000
LOG2E=1.4426950408889634
import struct, os
def fbits(x): return struct.unpack("<I", struct.pack("<f", x))[0]
K1_LDS=155648
RDS=int(os.environ.get("RDS","1"))
SC=os.environ.get("SC"," sc1")
MF="v_mfma_f32_32x32x16_bf16"
def r4(i): return "v[%d:%d]" % (i,i+3)
def r16(i): return "v[%d:%d]" % (i,i+15)
def interleave(main, fill):
    out=[]; n=len(main); k=0
    for i,m in enumerate(main):
        out.append(m)
        tgt=(len(fill)*(i+1)+n-1)//n
        while k<tgt: out.append(fill[k]); k+=1
    return out
def merge(a, b):
    out=[]; i=j=0
    while i<len(a) or j<len(b):
        if j>=len(b) or (i<len(a) and i*len(b)<=j*len(a)): out.append(a[i]); i+=1
        else: out.append(b[j]); j+=1
    return out
def gen_k1(A, name="k1_kernel", sentinel=False):
    WB=49152; TS=147456
    kernel_head(A, name)
    A("s_cmp_ge_u32 s2, 256\ns_cbranch_scc1 k1_done")
    stamp(A,0); stamp_rt(A,7)
    A("""s_load_dwordx8 s[8:15], s[0:1], 0
    s_load_dwordx4 s[20:23], s[0:1], 48
    s_load_dwordx2 s[16:17], s[0:1], 32
    s_load_dwordx2 s[18:19], s[0:1], 64
    s_load_dwordx2 s[24:25], s[0:1], 88
    s_load_dwordx2 s[80:81], s[0:1], 72
    v_readfirstlane_b32 s3, v0
    v_and_b32 v0, 63, v0
    s_and_b32 s4, s2, 7
    s_lshr_b32 s5, s2, 3
    s_lshr_b32 s3, s3, 6
    s_and_b32 s6, s4, 1
    s_lshl_b32 s6, s6, 3
    s_and_b32 s7, s5, 7
    s_add_u32 s6, s6, s7
%s
    s_lshr_b32 s44, s3, 2
    s_and_b32 s45, s3, 3
    s_and_b32 s46, s3, 1
    s_lshr_b32 s47, s3, 1
    s_lshl_b32 s48, s46, 1
    s_xor_b32 s48, s47, s48
    v_lshrrev_b32 v1, 4, v0
    v_bfe_u32 v2, v0, 2, 2
    v_and_b32 v3, 3, v0
    v_xor_b32 v4, v2, v1
    v_lshrrev_b32 v5, 5, v0
    v_and_b32 v6, 31, v0
    s_lshl_b32 s49, s3, 4
    v_lshrrev_b32 v7, 3, v0
    v_add_u32 v7, s49, v7
    v_mul_u32_u24 v8, 896, v7
    v_and_b32 v10, 7, v0
    v_xor_b32 v11, v10, v1
    v_lshl_add_u32 v8, v11, 4, v8
    v_xor_b32 v9, 64, v8
    v_add_u32 v9, 7168, v9""" % ("""s_lshr_b32 s7, s4, 1
    s_lshl_b32 s7, s7, 2
    s_lshr_b32 s5, s5, 3
    s_add_u32 s7, s7, s5""" if os.environ.get("SP","1")=="0" else """s_lshr_b32 s44, s4, 2
    s_bfe_u32 s45, s4, 0x10001
    s_mul_i32 s46, s44, 7
    s_lshl_b32 s47, s45, 2
    s_add_u32 s47, s47, s46
    s_add_u32 s46, s46, 3
    s_add_u32 s44, s44, 14
    s_lshr_b32 s7, s7, 2
    s_cmp_eq_u32 s7, s45
    s_cselect_b32 s46, s46, s44
    s_lshr_b32 s5, s5, 3
    s_add_u32 s47, s47, s5
    s_sub_u32 s47, s47, 1
    s_cmp_eq_u32 s5, 0
    s_cselect_b32 s7, s46, s47"""))
    A("""s_lshl_b32 s50, s7, 8
    s_sub_u32 s51, s7, 14
    s_lshl_b32 s51, s51, 9
    s_lshl_b32 s52, s44, 8
    s_add_u32 s51, s51, s52
    s_cmp_lt_u32 s7, 14
    s_movk_i32 s53, 896
    s_cselect_b32 s53, 3584, s53
    s_cselect_b32 s50, s50, s51
    s_lshl_b32 s57, s7, 1
    s_add_u32 s57, s57, s44
    s_cmp_eq_u32 s57, 31
    s_cselect_b32 s57, 2, 100
    v_mov_b32 v13, s53
    v_lshlrev_b32 v20, 6, v4
    v_add_u32 v20, s50, v20
    v_cmp_le_u32 vcc, s57, v4
    v_mov_b32 v17, 0
    v_mov_b32 v19, 0
    v_mov_b32 v21, 56
    v_cndmask_b32 v13, v13, v21, vcc
    v_cndmask_b32 v20, v20, v17, vcc
    s_lshl_b32 s58, s45, 4
    v_add_u32 v21, s58, v1
    v_mul_lo_u32 v21, v21, v13
    v_add_u32 v20, v20, v21
    v_lshl_add_u32 v16, v3, 4, v20
    v_cmp_eq_u32 s[70:71], s57, v4
    s_mul_i32 s59, s6, %d
    s_lshl_b32 s60, s3, 11
    s_mul_i32 s61, s45, 24576
    s_lshl_b32 s62, s44, 12
    s_add_u32 s61, s61, s62
    s_add_u32 s61, s61, %d
    s_waitcnt lgkmcnt(0)
    s_cmp_eq_u32 s44, 0
    s_cselect_b32 s32, s20, s22
    s_cselect_b32 s33, s21, s23
    s_cmp_lt_u32 s7, 14
    s_cselect_b32 s32, s32, s10
    s_cselect_b32 s33, s33, s11
    v_mov_b32 v14, s32
    v_mov_b32 v15, s33
    v_mov_b32 v21, s14
    v_mov_b32 v22, s15
    v_cndmask_b32 v14, v14, v21, vcc
    v_cndmask_b32 v15, v15, v22, vcc
    v_mov_b32 v21, s12
    v_mov_b32 v22, s13
    v_cndmask_b32 v14, v14, v21, s[70:71]
    v_cndmask_b32 v15, v15, v22, s[70:71]
    v_lshl_add_u64 v[14:15], v[16:17], 0, v[14:15]
    v_lshlrev_b32 v16, 2, v13
    v_mul_u32_u24 v18, 52, v13""" % (128*896, WB))
    srd(A, 28, 8, 2048*896)
    def dma(c):
        st=c%3; L=[]
        for p in range(4):
            L.append("s_add_u32 m0, s61, %d\ns_nop 0\nglobal_load_lds_dwordx4 v[14:15], off\nv_lshl_add_u64 v[14:15], v[%d:%d], 0, v[14:15]" % (st*8192+p*1024, 18 if p==3 else 16, 19 if p==3 else 17))
            if p%2==0:
                e=p//2
                L.append("s_add_u32 m0, s60, %d\ns_nop 0\nbuffer_load_dwordx4 v%d, s[28:31], s59 offen lds%s" % (st*16384+e*1024, 8+e, "\ns_add_u32 s59, s59, 128" if e else ""))
        return L
    VL=[]
    def emit(x, tag):
        A(x)
        for l in x.split("\n"):
            if l.strip().startswith(("buffer_","global_")): VL.append(tag)
    def vw(tag): return len(VL)-1-max(i for i,t in enumerate(VL) if t==tag)
    C1=int(os.environ.get("C1","1"))
    for c in range(1 if C1 else 2):
        for x in dma(c): emit(x,c)
    CP=int(os.environ.get("CP","2"))
    cpx="""s_getpc_b64 s[34:35]
    k1_pc:
    s_lshl_b32 s27, s3, 12
    v_lshlrev_b32 v62, 7, v6
    v_add_u32 v62, s27, v62
    v_min_u32 v62, k2_last-k1_pc, v62
    global_load_dword v63, v62, s[34:35]"""
    if CP==1: emit(cpx,"cp")
    if CP==3: emit(cpx.replace("global_load_dword v63, v62, s[34:35]","s_cmp_ge_u32 s3, 2\ns_cselect_b64 exec, 0, -1\nglobal_load_dword v63, v62, s[34:35]\ns_mov_b64 exec, -1"),"cp")
    if C1 in (4,5):
        A("s_barrier")
        for x in dma(1): emit(x,1)
    PF=int(os.environ.get("PF","0"))
    pfa="""s_and_b32 s62, s6, 7
        s_mul_i32 s62, s62, 40
        s_mul_i32 s63, s45, 10
        s_add_u32 s62, s62, s63
        s_add_u32 s62, s62, 128
        v_lshrrev_b32 v34, 1, v0
        v_add_u32 v34, s62, v34
        v_mul_lo_u32 v34, v34, s53
        v_and_b32 v35, 1, v0
        v_lshl_add_u32 v34, v35, 7, v34
        v_add_u32 v34, s50, v34
        s_and_b32 s62, s7, 3
        s_lshl_b32 s62, s62, 3
        s_add_u32 s62, s62, s3
        s_mul_i32 s62, s62, 3584
        s_mul_i32 s63, s6, %d
        s_add_u32 s34, s62, s63
        v_mul_u32_u24 v35, 52, v0
        v_lshrrev_b32 v35, 8, v35
        v_lshlrev_b32 v35, 8, v35
        v_lshl_add_u32 v35, v0, 7, v35
        s_cmp_eq_u32 s57, 2
        s_cselect_b32 s35, 0x55555, 0xfffff""" % (128*896)
    pfx="""s_mov_b32 exec_lo, s35
        s_mov_b32 exec_hi, 0
        global_load_dword v62, v34, s[32:33]
        s_mov_b32 exec_lo, 0xfffff
        buffer_load_dword v63, v35, s[28:31], s34 offen offset:256
        s_mov_b64 exec, -1"""
    if PF: A(pfa.replace("s_cselect_b32 s35, 0x55555, 0xfffff","s_mov_b32 s35, 0xfffff\ns_cselect_b32 s35, 0x55555, s35"))
    if PF==1: emit(pfx,"pf")
    stamp(A,1)
    srd(A, 40, 24, WS_SIZE)
    A("""s_lshl_b32 s63, s2, 3
    s_add_u32 s63, s63, s3
    s_mul_i32 s64, s63, 4682
    s_lshr_b32 s64, s64, 16
    s_mul_i32 s65, s64, 14
    s_sub_u32 s65, s63, s65
    s_mul_i32 s54, s64, 1821
    s_lshr_b32 s54, s54, 16
    s_mul_i32 s55, s54, 36
    s_sub_u32 s55, s64, s55
    s_lshr_b32 s69, s65, 1
    s_lshl_b32 s69, s69, 2
    s_add_u32 s69, s69, s54
    s_lshl_b32 s69, s69, 3
    s_add_u32 s69, s69, s55
    s_lshl_b32 s69, s69, 1
    s_lshr_b32 s68, s54, 1
    s_xor_b32 s68, s68, s65
    s_and_b32 s68, s68, 1
    s_xor_b32 s68, s68, 1
    s_add_u32 s69, s69, s68
    s_lshl_b32 s69, s69, 10
    s_add_u32 s69, s69, %d
    s_mul_i32 s66, s54, 28
    s_add_u32 s66, s66, s55
    s_lshl_b32 s66, s66, 4
    s_sub_u32 s56, s55, 28
    s_lshr_b32 s58, s56, 1
    s_lshl_b32 s54, s54, 2
    s_add_u32 s58, s58, s54
    s_mul_i32 s58, s58, 28
    s_and_b32 s56, s56, 1
    s_lshl_b32 s54, s56, 4
    s_add_u32 s58, s58, s54
    s_lshl_b32 s56, s56, 4
    s_sub_u32 s56, 64, s56
    s_cmp_lt_u32 s55, 28
    s_cselect_b32 s36, s18, s16
    s_cselect_b32 s37, s19, s17
    s_mov_b32 s38, %d
    s_cselect_b32 s38, %d, s38
    s_cselect_b32 s66, s66, s58
    s_cselect_b32 s56, 64, s56
    s_and_b32 s37, s37, 0xffff
    s_mov_b32 s39, 0x00020000
    s_mul_i32 s66, s66, 896
    s_lshl_b32 s67, s65, 6
    s_add_u32 s66, s66, s67
    s_mul_i32 s67, s65, 144
    s_add_u32 s67, s67, s64
    s_lshl_b32 s67, s67, 10
    s_add_u32 s67, s67, %d
    s_cmp_lt_u32 s55, 28
    s_cselect_b32 s67, s67, s69
    s_cmp_lt_u32 s63, 2016
    s_cselect_b32 s67, s67, 0x7fff0000
    v_cmp_gt_u32 vcc, s56, v0
    v_lshrrev_b32 v21, 2, v0
    v_mul_u32_u24 v21, 896, v21
    v_lshl_add_u32 v21, v3, 4, v21
    v_mov_b32 v22, 0x7fff0000
    v_cndmask_b32 v21, v22, v21, vcc
    s_lshl_b32 s68, s3, 10
    s_add_u32 s68, s68, %d
    v_lshlrev_b32 v49, 4, v0
    v_mov_b32 v23, v21""" % (WO_OFF-56*1024, 448*896, 1792*896, WF_OFF, TS))
    tj="s_mov_b32 m0, s68\ns_nop 0\nbuffer_load_dwordx4 v23, s[36:39], s66 offen lds"
    if not C1: emit(tj,"T")
    ES=int(os.environ.get("ES","1")); E1=int(os.environ.get("E1","23")); E2=int(os.environ.get("E2","24"))
    A("""s_lshl_b32 s26, s63, 10
    s_add_u32 s26, s26, %d
    v_mov_b32 v248, -1
    v_mov_b32 v249, -1
    v_mov_b32 v250, -1
    v_mov_b32 v251, -1""" % (OF_OFF))
    st1="buffer_store_dwordx4 v[248:251], v49, s[40:43], s26 offen%s" % SC
    st2="buffer_store_dwordx4 v[228:231], v49, s[40:43], s67 offen%s" % SC
    if not ES: emit(st1,"s")
    C3=int(os.environ.get("C3","0"))
    if C3==1:
        for x in dma(2): emit(x,2)
    TW=int(os.environ.get("TW","0")); TP=int(os.environ.get("TP","23"))
    if TW:
        srd(A, 76, 80, 2048*896)
        A("s_mul_i32 s27, s3, %d\nv_lshlrev_b32 v62, 16, v0" % (28*65536))
    tw="""s_mov_b32 exec_lo, 0x0fffffff
    s_mov_b32 exec_hi, 0
    buffer_load_dword v63, v62, s[40:43], s27 offen
    buffer_load_dword v63, v62, s[76:79], 0 offen
    s_mov_b64 exec, -1"""
    A("""v_bfe_u32 v20, v0, 1, 3
    v_xor_b32 v20, v20, v5
    v_lshlrev_b32 v20, 4, v20
    v_lshl_add_u32 v20, v6, 7, v20
    s_lshl_b32 s62, s46, 13
    v_add_u32 v20, s62, v20
    v_lshl_add_u32 v21, v5, 3, v2
    v_lshlrev_b32 v21, 8, v21
    v_xor_b32 v22, s47, v2
    v_lshl_add_u32 v21, v22, 6, v21
    v_and_b32 v22, 1, v1
    v_lshlrev_b32 v22, 5, v22
    v_lshl_add_u32 v22, v3, 3, v22
    v_add_u32 v21, v21, v22
    v_lshl_add_u32 v32, v5, 2, v2
    v_lshl_add_u32 v32, v32, 6, v22
    v_add_u32 v48, s68, v32""")
    for i in range(4):
        A("""s_xor_b32 s62, s48, %d
        s_lshl_b32 s69, s62, 5
        v_xor_b32 v%d, s69, v20
        s_mul_i32 s62, s62, 24576
        s_add_u32 s62, s62, %d
        v_add_u32 v%d, s62, v21""" % (i, 24+i, WB, 28+i))
    PK=int(os.environ.get("PK","0"))
    for r in (range(232,240) if PK else range(36,40)): A("v_mov_b32 v%d, 0" % r)
    A("""v_mov_b32 v33, 0x3f803f80
    v_cmp_eq_u32 vcc, 0, v6
    v_cmp_eq_u32 s[70:71], 20, v6
    s_mov_b32 s72, 0xffff0000
    s_mov_b32 s73, 0x07060302
    s_or_b64 vcc, vcc, s[70:71]
    s_mov_b32 s74, 0x%x
    v_cndmask_b32 v168, 0, v33, vcc
    v_mov_b32 v169, v168
    v_mov_b32 v170, v168
    v_mov_b32 v171, v168
    s_lshl_b32 s62, s46, 12
    s_add_u32 s62, s62, 16384
    v_lshlrev_b32 v44, 6, v6
    v_add_u32 v44, s62, v44
    s_lshl_b32 s69, s47, 4
    v_lshl_add_u32 v45, v5, 3, v44
    v_add_u32 v45, s69, v45
    s_lshl_b32 s62, s47, 9
    s_add_u32 s62, s62, 24576
    v_lshlrev_b32 v46, 2, v6
    v_add_u32 v46, s62, v46
    s_lshl_b32 s69, s46, 7
    v_add_u32 v47, s69, v46
    v_cmp_gt_u32 vcc, 32, v0
    s_lshl_b32 s75, s6, 2
    s_lshl_b32 s62, s46, 1
    s_add_u32 s75, s75, s62
    v_mov_b32 v190, 0
    v_mov_b32 v191, 0
    v_mov_b32 v194, 0
    v_mov_b32 v195, 0""" % fbits(1.0/448))
    D2=int(os.environ.get("D2","0"))
    def bb(P): return [128,144,232][P%3] if D2 else 128+16*(P%2)
    def xr(P, tok): return ((172+8*D2*((P//4)%2)) if P%4==0 else bb(P))+4*tok
    def wr(P, hf): return bb(P)+8+4*hf
    def reads(P):
        c,i=divmod(P,4); st=c%3; L=[]
        for hf in range(2):
            for z in range(2):
                L.append("ds_read_b64_tr_b16 v[%d:%d], v%d offset:%d" % (wr(P,hf)+2*z, wr(P,hf)+2*z+1, 28+i, st*8192+hf*4096+z*1024))
            L.append("ds_read_b128 %s, v%d offset:%d" % (r4(xr(P,hf)), 24+i, st*16384+hf*4096))
        return L
    so=[]
    for tok in range(2):
        for r in range(4):
            src=172+4*tok+r; t0=40+2*(r%2); t1=t0+1
            if PK:
                sa=232+4*tok; tt="v[%d:%d]" % (t0,t1)
                so+=["v_and_b32 v%d, s72, v%d" % (t0,src), "v_lshlrev_b32 v%d, 16, v%d" % (t1,src),
                    "v_pk_add_f32 v[%d:%d], v[%d:%d], %s" % (sa,sa+1,sa,sa+1,tt), "v_pk_fma_f32 v[%d:%d], %s, %s, v[%d:%d]" % (sa+2,sa+3,tt,tt,sa+2,sa+3)]
                continue
            so+=["v_and_b32 v%d, s72, v%d" % (t0,src), "v_lshlrev_b32 v%d, 16, v%d" % (t1,src),
                "v_add_f32 v%d, v%d, v%d" % (36+2*tok,36+2*tok,t0), "v_fmac_f32 v%d, v%d, v%d" % (37+2*tok,t0,t0),
                "v_add_f32 v%d, v%d, v%d" % (36+2*tok,36+2*tok,t1), "v_fmac_f32 v%d, v%d, v%d" % (37+2*tok,t1,t1)]
    MS=int(os.environ.get("MS","0"))
    if MS:
        A("v_mov_b32 v34, v33\nv_mov_b32 v35, v33\nv_cmp_eq_u32 s[76:77], 1, v3\nv_cmp_eq_u32 s[78:79], 2, v3\nv_cmp_eq_u32 s[34:35], 3, v3")
        def ms(first):
            L=[]
            for z in range(2):
                for tok in range(2):
                    src="v[%d:%d]" % (172+4*tok+2*z,173+4*tok+2*z)
                    for kind in range(2):
                        acc=r4(232+8*tok+4*kind)
                        L.append("v_mfma_f32_4x4x4_16b_bf16 %s, %s, %s, %s" % (acc, src if kind else "v[34:35]", src, "0" if first and z==0 else acc))
            return L
        msel=[]
        for tok in range(2):
            q=236+8*tok
            msel+=["v_mov_b32 v%d, v%d" % (36+2*tok, 232+8*tok), "v_cndmask_b32 v%d, v%d, v%d, s[76:77]" % (37+2*tok,q,q+1),
                   "v_cndmask_b32 v%d, v%d, v%d, s[78:79]" % (37+2*tok,37+2*tok,q+2), "v_cndmask_b32 v%d, v%d, v%d, s[34:35]" % (37+2*tok,37+2*tok,q+3)]
    fm=[]
    for st in (8,4,2):
        for tok in range(2):
            b=196+16*tok
            for j in range(st): fm.append("v_add_f32 v%d, v%d, v%d" % (b+j,b+j,b+j+st))
    seq="""v_mul_f32 v{s}, s74, v{s}
        v_mul_f32 v{q}, s74, v{q}
        v_fma_f32 v{q}, -v{s}, v{s}, v{q}
        v_max_f32 v{q}, 0, v{q}
        v_cvt_pk_bf16_f32 v{f}, -v{s}, -v{s}
        v_cvt_pk_bf16_f32 v{q}, v{q}, v{q}
        v_and_b32 v{q}, s72, v{q}
        v_add_f32 v{q}, 0x{eps:x}, v{q}
        v_cvt_pk_bf16_f32 v{q}, v{q}, v{q}
        v_and_b32 v{q}, s72, v{q}
        v_sqrt_f32 v{q}, v{q}
        v_mov_b32 v{f1}, v{f}
        v_cvt_pk_bf16_f32 v{q}, v{q}, v{q}
        v_and_b32 v{d}, s72, v{q}
        v_rcp_f32 v{r}, v{d}
        v_mov_b32 v{f2}, v{f}
        v_mov_b32 v{f3}, v{f}"""
    s0,s1=[seq.format(s=196+16*tok,q=197+16*tok,f=180+4*tok,f1=181+4*tok,f2=182+4*tok,f3=183+4*tok,d=54+tok,r=56+tok,eps=fbits(1e-5)).split("\n") for tok in range(2)]
    for a_,b_ in zip(s0,s1): fm+=[a_,b_]
    for hf in range(2):
        fm+="""v_add_f32 v{c}, v{c}, v{c1}
        v_cndmask_b32 v{c}, 0, v{c}, vcc
        v_and_b32 v58, s72, v{c}
        v_sub_f32 v59, v{c}, v58
        v_and_b32 v60, s72, v59
        v_sub_f32 v61, v59, v60
        v_perm_b32 v{f}, v60, v58, s73
        v_lshrrev_b32 v{f1}, 16, v61""".format(c=50+2*hf,c1=51+2*hf,f=188+4*hf,f1=189+4*hf).split("\n")
    if C1 in (1,3):
        for x in dma(1): emit(x,1)
        if C1==1: emit(tj,"T")
    if C1==5:
        for x in dma(2): emit(x,2)
        C3=1
    A("s_waitcnt vmcnt(%d)\ns_barrier" % vw(0))
    stamp(A,2)
    for x in reads(0): A(x)
    if C1==2:
        for x in dma(1): emit(x,1)
    if C1>=2: emit(tj,"T")
    if D2:
        for x in reads(1): A(x)
    if PF==2: emit(pfx,"pf")
    pend=[(x,2) for x in dma(2)] if not C3 else []
    if os.environ.get("PR"): A("s_cmp_eq_u32 s44, 0\ns_cbranch_scc1 k1_pr\ns_setprio 1\nk1_pr:")
    for P in range(28):
        c,i=divmod(P,4)
        if os.environ.get("FS"):
            if P in (4,8,12,20): stamp(A,{4:1,8:3,12:4,20:5}[P])
        elif P==12: stamp(A,3)
        rd=reads(P+1+D2) if P+1+D2<28 else []
        va=[]
        if i==3-D2 and c<6:
            assert not pend
            A("s_waitcnt vmcnt(%d) lgkmcnt(0)\ns_barrier" % vw(c+1))
            if c+3<=6: pend=[(x,c+3) for x in dma(c+3)]
        elif P==26:
            A("""s_mov_b32 exec_hi, 0
            ds_write_b32 v47, v160
            ds_write_b32 v47, v164 offset:256
            s_mov_b32 exec_hi, -1
            ds_write_b64 v45, v[36:37]
            ds_write_b64 v45, v[38:39] offset:2048
            s_waitcnt lgkmcnt(0)
            s_barrier""")
            ex=[]
            for tok in range(2):
                for q in range(4): ex.append("ds_read_b128 %s, v44 offset:%d" % (r4(196+16*tok+4*q), tok*2048+q*16))
            ex+=["ds_read2_b32 v[50:51], v46 offset0:0 offset1:32","ds_read2_b32 v[52:53], v46 offset0:64 offset1:96"]
            rd=ex+rd
        else:
            A("s_waitcnt lgkmcnt(%d)" % (6 if D2 and P<27 else 0))
        ns=len(so)
        if c<6:
            if i<3: va=so[ns*i//3//4*4:ns*(i+1)//3//4*4] if PK else so[16*i:16*i+16]
        elif i<2:
            va=so[ns//2*i:ns//2*(i+1)]
            if PK and i==1: va=va+["v_add_f32 v%d, v%d, v%d" % (36+j,232+2*j,233+2*j) for j in range(4)]
        if MS:
            va=[]
            if c<6:
                if MS==1 and i in (2,): va=ms(c==0)[:4]
                if MS==1 and i==1: va=[]
                if MS==1 and i==0: va=[]
            m_=ms(c==0)
            if c<6: va={0:m_[:2],1:m_[2:4],2:m_[4:],3:[]}[i] if MS==1 else {0:m_[:4],1:m_[4:],2:[],3:[]}[i]
            else: va={0:m_,1:[],2:[],3:[]}[i]
            if P==25: va=["s_nop 0"]*3+msel
        if D2 and c%2:
            for r in range(172,180): va=[x.replace("v%d" % r, "v%d" % (r+8)) for x in va]
        if P==9: rd=rd+["ds_read_b64_tr_b16 v[228:229], v48","ds_read_b64_tr_b16 v[230:231], v48 offset:512"]
        if P==27: va=fm
        take=2 if i!=2 else len(pend)
        if D2: take=3 if P<2 else 2
        dm=pend[:take]; pend=pend[take:]
        if CP==2 and P==TP: dm=dm+[(cpx,"cp")]
        if CP==3 and P==TP: dm=dm+[("global_load_dword v63, v62, s[34:35]","cp")]
        if TW and P==TP: dm=dm+[(tw,"tw")]
        if ES and P==E1: dm=dm+[(st1,"s")]
        if ES and P==E2: dm=dm+[(st2,"s")]
        if PF==3 and P==2-D2: dm=dm+[(pfx,"pf")]
        mm=[]
        for hf in range(2):
            if i<2:
                mm.append("v_mfma_f32_16x16x32_bf16 %s, v[168:171], %s, %s" % (r4(160+4*hf),r4(wr(P,hf)),r4(160+4*hf) if P else "0"))
            for tok in range(2):
                acc=64+32*hf+16*tok
                mm.append("%s %s, %s, %s, %s" % (MF,r16(acc),r4(wr(P,hf)),r4(xr(P,tok)),r16(acc) if P else "0"))
        if P==25: mm=[mm[0],mm[3],mm[1],mm[2],mm[4],mm[5]]
        X=os.environ.get("X","")
        if "v" in X and P<27: va=[]
        if "c" in X: mm=[m for m in mm if "16x16" not in m]
        if "d" in X: dm=[]
        if "t" in X: rd=[r for r in rd if "tr_b16" not in r]
        if "x" in X: rd=[r for r in rd if "b128" not in r]
        n=len(mm); slots=[[] for _ in range(n)]
        nr=RDS
        for j,x in enumerate(rd): slots[min(n-1,j*nr//len(rd))].append(x)
        DP=int(os.environ.get("DP","2"))
        for j,x in enumerate(dm): slots[n-DP+(j*2)//len(dm)].append(x)
        for j,x in enumerate(va): slots[j*n//len(va)].append(x)
        for j in range(n):
            A(mm[j])
            for x in slots[j]:
                if isinstance(x,tuple): emit(*x)
                else: A(x)
    if not os.environ.get("FS"): stamp(A,4)
    A("s_nop 1" if ES else st2+"\ns_nop 0")
    for tok in range(2):
        for hf in range(2):
            acc=64+32*hf+16*tok
            A("%s %s, %s, %s, %s" % (MF,r16(acc),r4(188+4*hf),r4(180+4*tok),r16(acc)))
    A("s_cmp_ge_u32 s7, 14\ns_cbranch_scc1 k1_qkv")
    if not os.environ.get("FS"): stamp(A,5)
    A("""v_mul_f32 v58, 0x%x, v56
    v_mul_f32 v59, 0x%x, v57
    s_mul_i32 s76, s75, %d
    s_lshl_b32 s62, s7, 2
    s_add_u32 s62, s62, s47
    s_lshl_b32 s62, s62, 11
    s_add_u32 s76, s76, s62
    s_add_u32 s76, s76, %d
    s_add_u32 s77, s76, %d
    s_cmp_eq_u32 s44, 1
    s_nop 3""" % (fbits(-LOG2E), fbits(-LOG2E), 112*1024, HF_OFF, 112*1024))
    for tok in range(2):
        G=64+16*tok; U=96+16*tok
        for half in range(2):
            rs=range(8*half,8*half+8)
            PE=int(os.environ.get("PE","1"))
            p2=lambda r: "v[%d:%d]" % (r,r+1)
            if PE:
                for r in rs[::2]: A("v_pk_mul_f32 %s, %s, v[58:59] op_sel:[0,%d] op_sel_hi:[1,%d]" % (p2(G+r),p2(G+r),tok,tok))
            else:
                for r in rs: A("v_mul_f32 v%d, v%d, v%d" % (G+r,G+r,58+tok))
            for r in rs: A("v_exp_f32 v%d, v%d" % (G+r,G+r))
            if PE:
                for r in rs[::2]: A("v_pk_fma_f32 %s, %s, v[54:55], v[54:55] op_sel:[0,%d,%d] op_sel_hi:[1,%d,%d]" % (p2(G+r),p2(G+r),tok,tok,tok,tok))
            else:
                for r in rs: A("v_fma_f32 v%d, v%d, v%d, v%d" % (G+r,G+r,54+tok,54+tok))
            for r in rs: A("v_rcp_f32 v%d, v%d" % (G+r,G+r))
            if PE:
                for r in rs[::2]: A("v_pk_mul_f32 %s, %s, %s" % (p2(U+r),p2(U+r),p2(G+r)))
            else:
                for r in rs: A("v_mul_f32 v%d, v%d, v%d" % (U+r,U+r,G+r))
            o=128+8*tok+4*half
            for j in range(4): A("v_cvt_pk_bf16_f32 v%d, v%d, v%d" % (o+j,U+8*half+2*j,U+8*half+2*j+1))
            HP=int(os.environ.get("HP","0")); HY=int(os.environ.get("HY","0"))
            stx="buffer_store_dwordx4 %s, v49, s[40:43], s%d offen offset:%d" % (r4(o),76+tok,half*1024)
            if 2*tok+half>=4-HY:
                A("s_cbranch_scc1 k1_y%d\n%s%s\ns_branch k1_z%d\nk1_y%d:\n%s\nk1_z%d:" % (o,stx,SC,o,o,stx,o))
            else: A(stx+(SC if 2*tok+half<4-HP else ""))
    if os.environ.get("QS"): stamp(A,3)
    stamp_out(A,7)
    A("s_endpgm")
    A.label("k1_qkv")
    if not os.environ.get("FS"): stamp(A,5)
    qs=LOG2E*28**-0.5
    A("""s_sub_u32 s76, s7, 14
    s_lshl_b32 s76, s76, 3
    s_add_u32 s76, s76, s47
    s_mov_b32 s77, 0x%x
    s_cmp_ge_u32 s76, 10
    s_cselect_b32 s78, 1.0, s77
    s_cselect_b32 s71, -1, 0
    s_mov_b32 s70, 0
    s_cmp_eq_u32 s76, 10
    s_cselect_b32 s79, 0x3f803f80, 0
    s_cselect_b32 s80, 0x3f80, 0
    s_or_b32 s79, s79, 0x3f80
    v_mov_b32 v40, s79
    v_mov_b32 v41, s80
    v_mul_f32 v58, s77, v56
    v_mul_f32 v59, s77, v57
    v_mul_f32 v60, s78, v56
    v_mul_f32 v61, s78, v57
    s_mul_i32 s62, s46, 49152
    s_add_u32 s62, s62, %d
    v_and_b32 v42, 15, v0
    s_lshl_b32 s69, s47, 2
    v_xor_b32 v42, s69, v42
    v_lshlrev_b32 v42, 4, v42
    v_lshl_add_u32 v42, v5, 3, v42
    v_lshl_add_u32 v42, v6, 9, v42
    v_add_u32 v42, s62, v42""" % (fbits(qs), WB+8192))
    for q in range(1,4): A("v_xor_b32 v%d, %d, v42" % (32+q, 16*q))
    A("v_mov_b32 v32, v42")
    for hf in range(2):
        for tok in range(2):
            a0=64+32*hf+16*tok; o=128+16*hf+8*tok
            for j in range(0,16,2): A("v_pk_mul_f32 v[%d:%d], v[%d:%d], v[%d:%d] op_sel:[0,%d] op_sel_hi:[1,%d]" % (a0+j,a0+j+1,a0+j,a0+j+1,58+2*hf,59+2*hf,tok,tok))
            for j in range(8): A("v_cvt_pk_bf16_f32 v%d, v%d, v%d" % (o+j,a0+2*j,a0+2*j+1))
            if hf: A("v_cndmask_b32 v%d, v%d, v40, s[70:71]\nv_cndmask_b32 v%d, v%d, v41, s[70:71]" % (o+6,o+6,o+7,o+7))
            for q in range(4): A("ds_write_b64 v%d, v[%d:%d] offset:%d" % (32+q,o+2*q,o+2*q+1,tok*24576+hf*256))
    if os.environ.get("QS"): stamp(A,1)
    A("""s_mul_i32 s62, s47, 24576
    s_lshl_b32 s69, s46, 13
    s_add_u32 s62, s62, s69
    s_add_u32 s62, s62, %d
    v_xor_b32 v43, v6, v5
    v_lshlrev_b32 v43, 4, v43
    v_lshl_add_u32 v43, v5, 9, v43
    v_add_u32 v43, s62, v43
    s_lshl_b32 s62, s6, 7
    s_add_u32 s62, s62, s49
    s_mul_i32 s62, s62, 896
    s_sub_u32 s69, s7, 14
    s_lshl_b32 s69, s69, 9
    s_add_u32 s81, s62, s69
    s_cmp_eq_u32 s7, 15
    s_cselect_b32 s69, 24, 32
    v_mul_u32_u24 v44, 896, v5
    v_lshl_add_u32 v44, v6, 4, v44
    v_cmp_gt_u32 vcc, s69, v6
    v_mov_b32 v45, 0x7fff0000
    s_waitcnt lgkmcnt(0)
    s_barrier
    v_cndmask_b32 v44, v45, v44, vcc""" % (WB+8192))
    if os.environ.get("QS"): stamp(A,2)
    KS=os.environ.get("KS","")
    A("s_cmp_eq_u32 s7, 14\ns_cbranch_scc1 k1_fin")
    A("""s_lshl_b32 s77, s6, 2
    s_add_u32 s77, s77, s45
    s_lshl_b32 s77, s77, 12
    s_add_u32 s77, s77, %d
    s_mul_i32 s62, s45, 24576
    s_add_u32 s62, s62, %d
    s_cmp_eq_u32 s44, 1
    s_cbranch_scc1 k1_v
    v_and_b32 v52, 15, v0
    v_xor_b32 v52, v52, v5
    v_xor_b32 v52, 24, v52
    v_lshlrev_b32 v52, 4, v52
    v_lshl_add_u32 v52, v6, 9, v52
    v_add_u32 v52, s62, v52
    v_xor_b32 v53, 32, v52
    ds_read_b128 v[96:99], v52
    ds_read_b128 v[100:103], v53
    s_waitcnt lgkmcnt(0)
    buffer_store_dwordx4 v[96:99], v49, s[40:43], s77 offen%s
    buffer_store_dwordx4 v[100:103], v49, s[40:43], s77 offen offset:1024%s
    s_branch k1_fin""" % (KV_OFF, WB+8192, KS, KS))
    A.label("k1_v")
    A("""v_lshl_add_u32 v52, v5, 2, v2
    v_and_b32 v53, 1, v1
    v_lshlrev_b32 v53, 1, v53
    v_bfe_u32 v55, v0, 1, 1
    v_add3_u32 v53, v53, v55, 28
    v_xor_b32 v53, v53, v52
    v_lshlrev_b32 v53, 4, v53
    v_lshl_add_u32 v53, v52, 9, v53
    v_and_b32 v55, 1, v0
    v_lshl_add_u32 v53, v55, 3, v53
    v_add_u32 v52, s62, v53
    v_xor_b32 v53, 128, v52
    ds_read_b64_tr_b16 v[96:97], v52
    ds_read_b64_tr_b16 v[98:99], v53 offset:4096
    ds_read_b64_tr_b16 v[100:101], v52 offset:8192
    ds_read_b64_tr_b16 v[102:103], v53 offset:12288
    s_waitcnt lgkmcnt(0)
    buffer_store_dwordx4 v[96:99], v49, s[40:43], s77 offen offset:2048%s
    buffer_store_dwordx4 v[100:103], v49, s[40:43], s77 offen offset:3072%s""" % (KS, KS))
    A.label("k1_fin")
    for i in range(8):
        A("v_xor_b32 v45, %d, v43\nds_read_b128 %s, v45 offset:%d" % (32*i, r4(64+4*i), i*1024))
    for i in range(8):
        A("s_waitcnt lgkmcnt(%d)\nbuffer_store_dwordx4 %s, v44, s[40:43], s81 offen%s\ns_add_u32 s81, s81, 1792" % (7-i, r4(64+4*i), SC if i<int(os.environ.get("QP","0")) else ""))
    if os.environ.get("QS"): stamp(A,3)
    stamp_out(A,7)
    A.label("k1_done")
    A("s_endpgm")
    return kernel_desc(name, 252, 102)
```
